```python
import torch

def _softmax(x, axis=-1):
    return torch.softmax(x, dim=axis)

def _gelu(x):
    return torch.nn.functional.gelu(x, approximate='tanh')

def _silu(x):
    return torch.nn.functional.silu(x)

def _sigmoid(x):
    return torch.sigmoid(x)

def _layernorm(x, axis=-1, eps=1e-05):
    m = x.mean(dim=axis, keepdim=True)
    v = x.var(dim=axis, keepdim=True, unbiased=False)
    return (x - m) / torch.sqrt(v + eps)

def _scatter_add(tgt, idx, src, axis=0):
    return tgt.clone().index_add_(axis, idx, src)

def _segment_sum(src, seg, n):
    out = torch.zeros((n,) + src.shape[1:], dtype=src.dtype)
    return out.index_add_(0, seg, src)

def _pad(x, pw):
    flat = tuple((v for pair in reversed(pw) for v in pair))
    return torch.nn.functional.pad(x, flat)
kernel_name = 'gated_mix__memory_aug_recurrent_mem_tr__moe_arch_mod__prompt'

def setup_inputs():

    _w = lambda a: (lambda t: t.to(torch.bfloat16) if t.is_floating_point() else t)(torch.as_tensor(a))

    def _A_setup():
        B, S, Dm = (1, 2048, 1024)
        H, Dh = (32, 128)
        M, seg = (8, 32)
        seg = min(seg, S)
        S = S // seg * seg
        return {'x': _w((lambda *s: torch.randn(*s, dtype=torch.bfloat16) * 0.05)(B, S, Dm)), 'mem0': _w((lambda *s: torch.randn(*s, dtype=torch.bfloat16) * 0.8)(B, M, Dm)), 'Wq': _w((lambda *s: torch.randn(*s, dtype=torch.bfloat16) * 3.2)(Dm, H, Dh) * Dm ** (-0.5)), 'Wk': _w((lambda *s: torch.randn(*s, dtype=torch.bfloat16) * 3.2)(Dm, H, Dh) * Dm ** (-0.5)), 'Wv': _w((lambda *s: torch.randn(*s, dtype=torch.bfloat16) * 0.8)(Dm, H, Dh) * Dm ** (-0.5)), 'Wo': _w((lambda *s: torch.randn(*s, dtype=torch.bfloat16) * 0.8)(H, Dh, Dm) * (H * Dh) ** (-0.5)), 'seg_len': seg}
    _A_in = _A_setup()

    def _B_setup():
        B, S, D, F, C = (1, 2048, 1024, 3584, 8)
        return {'x': _w((lambda *s: torch.randn(*s, dtype=torch.bfloat16) * 0.05)(B, S, D)), 'w_r': _w((lambda *s: torch.randn(*s, dtype=torch.bfloat16) * 1.6)(D)), 'w_gate': _w((lambda *s: torch.randn(*s, dtype=torch.bfloat16) * 0.1)(D, F)), 'w_up': _w((lambda *s: torch.randn(*s, dtype=torch.bfloat16) * 0.1)(D, F)), 'w_down': _w((lambda *s: torch.randn(*s, dtype=torch.bfloat16) * 0.1)(F, D))}
    _B_in = _B_setup()
    return {'A_x': _A_in['x'], 'A_mem0': _A_in['mem0'], 'A_Wq': _A_in['Wq'], 'A_Wk': _A_in['Wk'], 'A_Wv': _A_in['Wv'], 'A_Wo': _A_in['Wo'], 'A_seg_len': _A_in['seg_len'], 'B_x': _B_in['x'], 'B_w_r': _B_in['w_r'], 'B_w_gate': _B_in['w_gate'], 'B_w_up': _B_in['w_up'], 'B_w_down': _B_in['w_down'], 'gate_w': _w((lambda *s: torch.randn(*s, dtype=torch.bfloat16) * 0.05)(1024) * 16.0)}

def reference(A_x, A_mem0, A_Wq, A_Wk, A_Wv, A_Wo, A_seg_len, B_x, B_w_r, B_w_gate, B_w_up, B_w_down, gate_w):

    def _A_ref(x, mem0, Wq, Wk, Wv, Wo, seg_len):
        B, S, Dm = x.shape
        H, Dh = (Wq.shape[1], Wq.shape[2])
        M = mem0.shape[1]
        scale = Dh ** (-0.5)
        n_seg = S // seg_len
        L = M + seg_len
        idx = torch.arange(L)
        mask = (idx[:, None] < M) | (idx[:, None] >= idx[None, :])
        mem = mem0
        outs = []
        for s in range(n_seg):
            xs = x[:, s * seg_len:(s + 1) * seg_len, :].clone()
            h = torch.concatenate([mem, xs], axis=1)
            q = torch.einsum('btd,dhe->bhte', h, Wq)
            k = torch.einsum('btd,dhe->bhte', h, Wk)
            v = torch.einsum('btd,dhe->bhte', h, Wv)
            scores = torch.einsum('bhqe,bhke->bhqk', q, k) * scale
            scores = torch.where(mask[None, None], scores, -1000000000.0)
            p = _softmax(scores, axis=-1)
            o = torch.einsum('bhqk,bhke->bhqe', p, v)
            o = torch.einsum('bhte,hed->btd', o, Wo)
            mem = o[:, :M, :].clone()
            outs.append(o[:, M:, :])
        return torch.concatenate(outs, axis=1)

    def _B_ref(x, w_r, w_gate, w_up, w_down):
        B, S, D = x.shape
        C = 8
        r = x @ w_r
        idx = torch.argsort(-r, axis=-1)[:, :C]
        idx_e = (lambda x, n, axis: torch.repeat_interleave(x, n, dim=axis))(idx.reshape(B, C, 1), D, axis=2)
        x_sel = (lambda x, i, axis: torch.take_along_dim(x, i, dim=axis))(x, idx_e, axis=1)
        g = _silu(x_sel @ w_gate)
        u = x_sel @ w_up
        y = g * u @ w_down
        r_sel = _sigmoid((lambda x, i, axis: torch.take_along_dim(x, i, dim=axis))(r, idx, axis=1))
        y = y * r_sel.reshape(B, C, 1)
        b_off = (torch.arange(B) * S).reshape(B, 1)
        flat_idx = (idx + b_off).reshape(B * C)
        zero = (x * 0.0).reshape(B * S, D)
        upd = _scatter_add(zero, flat_idx, y.reshape(B * C, D), axis=0)
        return x + upd.reshape(B, S, D)
    x = A_x
    g = _sigmoid((x * gate_w).sum(-1, keepdims=True))
    a = _A_ref(x, A_mem0, A_Wq, A_Wk, A_Wv, A_Wo, A_seg_len)
    b = _B_ref(x, B_w_r, B_w_gate, B_w_up, B_w_down)
    return g * a + (1 - g) * b
```

```python
import re

def _expand(tok):
    tok = tok.strip()
    if tok.startswith('-'): tok = tok[1:]
    if tok.startswith('abs(') and tok.endswith(')'): tok = tok[4:-1]
    if tok.startswith('|') and tok.endswith('|'): tok = tok[1:-1]
    m = re.fullmatch(r'([vas])(\d+)', tok)
    if m: return {(m.group(1), int(m.group(2)))}
    m = re.fullmatch(r'([vas])\[(\d+):(\d+)\]', tok)
    if m: return {(m.group(1), i) for i in range(int(m.group(2)), int(m.group(3)) + 1)}
    if tok in ('vcc', 'vcc_lo', 'vcc_hi'): return {('s', 'vcc')}
    if tok in ('exec', 'exec_lo', 'exec_hi'): return {('s', 'exec')}
    if tok == 'm0': return {('s', 'm0')}
    return set()

TRANS = ('v_exp_f32', 'v_log_f32', 'v_rcp_f32', 'v_rsq_f32', 'v_sqrt_f32', 'v_sin_f32', 'v_cos_f32')

class Ins:
    def __init__(self, text):
        self.text = text
        t = text.split(';')[0].strip()
        self.op = t.split()[0] if t else ''
        rest = t[len(self.op):].strip()
        rest = re.sub(r'\s+(op_sel|op_sel_hi|neg_lo|neg_hi|quad_perm):\[([^\]]*)\]', lambda m: ' ' + m.group(1) + ':' + m.group(2).replace(',', '_'), rest)
        self.args = [a.strip() for a in rest.split(',')] if rest else []
        if self.args:
            last = self.args[-1].split()
            self.mods = last[1:]
            self.args[-1] = last[0] if last else ''
        else:
            self.mods = []
        op = self.op
        self.is_mfma = op.startswith('v_mfma') or op.startswith('v_smfmac')
        self.is_valu = op.startswith('v_') and not self.is_mfma
        self.is_vmem = op.startswith(('buffer_', 'global_'))
        self.is_ds = op.startswith('ds_')
        self.is_salu = op.startswith('s_')
        self.dpp = any(m.startswith(('row_', 'quad_perm', 'wave_')) for m in self.mods) or op.endswith('_dpp')
        self.wr = set(); self.rd = set(); self.srcc = set(); self.srcab = set(); self.stdata = set()
        a = self.args
        R = _expand
        if self.is_mfma:
            self.wr = R(a[0]); self.srcab = R(a[1]) | R(a[2])
            if op.startswith('v_smfmac'):
                self.srcc = R(a[0]); self.srcab |= R(a[3])
            else:
                self.srcc = R(a[3])
            self.rd = self.srcab | self.srcc
            self.passes = 8 if '32x32' in op else 4
        elif self.is_valu:
            if op.startswith('v_cmp'):
                self.wr = R(a[0]); self.rd = set().union(*[R(x) for x in a[1:]])
                if op.startswith('v_cmpx'): self.wr |= {('s', 'exec')}
            elif op.startswith('v_permlane'):
                self.wr = R(a[0]) | R(a[1]); self.rd = set(self.wr)
            elif op in ('v_nop',):
                pass
            elif '_co_' in op:
                self.wr = R(a[0]) | R(a[1]); self.rd = set().union(*[R(x) for x in a[2:]])
            else:
                self.wr = R(a[0]); self.rd = set().union(*[R(x) for x in a[1:]]) if len(a) > 1 else set()
                if op.startswith(('v_fmac', 'v_dot2c', 'v_writelane')) or self.dpp: self.rd |= self.wr
        elif self.is_vmem:
            lds = 'lds' in self.mods or '_lds_' in op
            allr = [R(x) for x in a]
            if 'load' in op and not lds:
                self.wr = allr[0]; self.rd = set().union(*allr[1:])
            elif 'atomic' in op:
                self.rd = set().union(*allr)
                if 'sc0' in self.mods: self.wr = allr[0]
            else:
                self.rd = set().union(*allr)
                if lds: self.rd |= {('s', 'm0')}
                if 'store' in op and ('x3' in op or 'x4' in op):
                    self.stdata = allr[0] if op.startswith('buffer_') else allr[1]
            self.lds = lds
        elif self.is_ds:
            allr = [R(x) for x in a]
            if 'read' in op or 'permute' in op or 'swizzle' in op:
                self.wr = allr[0]; self.rd = set().union(*allr[1:])
            else:
                self.rd = set().union(*allr)
        elif self.is_salu:
            if op.startswith(('s_cmp', 's_cbranch', 's_branch', 's_waitcnt', 's_nop', 's_barrier', 's_endpgm', 's_sleep', 's_setprio', 's_bitcmp')):
                self.rd = set().union(*[R(x) for x in a]) if a else set()
            else:
                self.wr = R(a[0]) if a else set(); self.rd = set().union(*[R(x) for x in a[1:]]) if len(a) > 1 else set()
                if 'saveexec' in op: self.wr |= {('s', 'exec')}
    def states(self):
        if self.op == 's_nop': return int(self.args[0], 0) + 1
        return 1

def need(p, c):
    n = 0
    isv = lambda s: {r for r in s if r[0] in 'va'}
    iss = lambda s: {r for r in s if r[0] == 's'}
    if p.is_mfma:
        k = {4: (0, 6, 8, 8, 3), 8: (0, 10, 12, 12, 7)}[p.passes]
        if c.is_mfma:
            if p.wr & c.srcab: n = max(n, k[2])
            if p.wr & c.srcc:
                n = max(n, k[0] if (p.wr == c.srcc and p.passes == c.passes) else k[1])
            elif p.wr & c.wr: n = max(n, k[1])
        elif c.is_valu or c.is_vmem or c.is_ds:
            if p.wr & (c.rd | c.wr): n = max(n, k[3])
            if c.is_valu and (p.srcc & c.wr): n = max(n, k[4])
    if p.is_valu:
        if c.is_mfma and (isv(p.wr) & c.rd): n = max(n, 2)
        if c.is_mfma and (('s', 'exec') in p.wr): n = max(n, 4)
        if c.is_valu:
            if c.dpp and (isv(p.wr) & c.rd): n = max(n, 2)
            if c.dpp and (('s', 'exec') in p.wr): n = max(n, 5)
            if c.op.startswith('v_permlane') and (isv(p.wr) & c.rd): n = max(n, 2)
            if c.op.startswith(('v_readlane', 'v_readfirstlane')) and (isv(p.wr) & c.rd): n = max(n, 1)
            if p.op.replace('_e32', '').replace('_e64', '') in TRANS and (p.wr & c.rd): n = max(n, 1)
            if iss(p.wr) & c.rd:
                n = max(n, 4 if c.op.startswith(('v_readlane', 'v_writelane')) else 2)
        if c.is_vmem and (iss(p.wr) & c.rd): n = max(n, 5)
        if c.is_salu and (iss(p.wr) & c.rd) and not c.op.startswith('s_cbranch'): n = max(n, 1)
    if p.is_ds or p.is_vmem:
        pass
    if p.is_vmem and p.stdata and (p.stdata & c.wr): n = max(n, 2)
    if p.is_salu and (('s', 'm0') in p.wr) and c.is_vmem and getattr(c, 'lds', False): n = max(n, 1)
    return n

def _times(seq):
    t = 0; last_m = None
    for k, p in enumerate(seq):
        if p.is_mfma:
            if last_m is not None: t = max(t, last_m)
            last_m = t + p.passes
        t += p.states()
    return t, last_m

def min_states(seq, c):
    t, last_m = _times(seq)
    return t - 1

def plain_or(seq, c, n):
    t, _ = _times(seq)
    return t - 1

class Asm:
    def __init__(self):
        self.lines = []
        self.uid = 0
    def __call__(self, text):
        for ln in text.split('\n'):
            s = ln.strip()
            if not s: continue
            if s.startswith(';') or s.endswith(':') or s.startswith('.'):
                self.lines.append(s)
            else:
                self._ins(Ins(s))
        return self
    def _ins(self, c):
        pad = 0; hist = []; dist = 0
        for p in reversed(self.lines):
            if isinstance(p, str): continue
            if p.op in ('s_branch', 's_endpgm'): break
            hist.append(p); dist += p.states()
            if dist >= 13: break
        hist.reverse()
        for i, p in enumerate(hist):
            n = need(p, c)
            if n == 0: continue
            d = min_states(hist[i:], c)
            if n > d: pad = max(pad, n - plain_or(hist[i:], c, n))
        while pad > 0:
            k = min(pad, 16)
            self.lines.append(Ins(f's_nop {k-1}')); pad -= k
        self.lines.append(c)
    def label(self, base):
        self.uid += 1
        return f'L_{base}_{self.uid}'
    def text(self):
        out = []
        for l in self.lines:
            if isinstance(l, str): out.append(l if (l.endswith(':') or l.startswith('.')) else '    ' + l)
            else: out.append('    ' + l.text)
        return '\n'.join(out) + '\n'
    def check_branches(self):
        labels = {l[:-1]: i for i, l in enumerate(self.lines) if isinstance(l, str) and l.endswith(':')}
        bad = []
        for i, b in enumerate(self.lines):
            if isinstance(b, str) or not b.op.startswith(('s_cbranch', 's_branch')): continue
            tgt = labels.get(b.args[0])
            if tgt is None: continue
            hist = []; d = 0
            for p in reversed(self.lines[:i + 1]):
                if isinstance(p, str): continue
                if p is not b and p.op in ('s_branch', 's_endpgm'): break
                hist.append(p); d += p.states()
                if d >= 13: break
            hist.reverse()
            off = 0; fwd = []
            for c in self.lines[tgt:]:
                if isinstance(c, str): continue
                for k, p in enumerate(hist):
                    n = need(p, c)
                    if n and n > min_states(hist[k:] + fwd, c): bad.append((p.text, b.text, c.text))
                fwd.append(c)
                off += c.states()
                if off >= 12 or c.op in ('s_branch', 's_endpgm'): break
        return bad

def vr(n, k=1): return f'v{n}' if k == 1 else f'v[{n}:{n+k-1}]'
def ar(n, k=1): return f'a{n}' if k == 1 else f'a[{n}:{n+k-1}]'
def sr(n, k=1): return f's{n}' if k == 1 else f's[{n}:{n+k-1}]'
```

```python
from asmlib import *

KNAME = "gated_mix__memory_aug_recurrent_mem_tr__moe_arch_mod__prompt_kernel"

WS_KX  = 0x0000000
WS_VX  = 0x1000000
WS_O   = 0x2000000
WS_KVM = 0x3000000
WS_RC  = 0x4000000
WS_FC  = 0x4080000
WS_RA  = 0x4280000
WS_RS  = 0x4300000
WS_FL  = 0x4200000
FL_KV  = WS_FL
FL_M   = WS_FL + 0x1000
FL_O   = WS_FL + 0x2000
FL_Y   = WS_FL + 0x3000
FL_EO  = WS_FL + 0x4000
FL_ES  = WS_FL + 0x8000
WS_RP  = 0x4400000
WS_RG  = 0x4800000
WS_YP  = 0x4900000
WS_DBG = 0x6000000
WS_SIZE = 0x10000000
OOB = 0x80000000

S_WS = 4
S_T  = 8
S_X, S_J, S_W, S_BUD = 12, 13, 14, 15
P_X, P_MEM0, P_WQ, P_WK, P_WV, P_WO = 16, 18, 20, 22, 24, 26
P_WR, P_WG, P_WU, P_WD, P_GW, P_OUT, P_DBG, P_WSP = 32, 34, 36, 38, 40, 42, 44, 46
S_B0 = 48
S_G = 64
S_PAR = 100

LDS_BYTES = 160 * 1024
LDS_MISC = 128 * 1024

def srd(a, d, p, nbytes):
    a(f"s_mov_b32 s{d}, s{p}\ns_and_b32 s{d+1}, s{p+1}, 0xffff\ns_mov_b32 s{d+2}, {nbytes}\ns_mov_b32 s{d+3}, 0x20000")

class VAlloc:
    def __init__(self, start): self.n = start
    def __call__(self, k=1, align=None):
        al = align or (2 if k > 1 else 1)
        self.n = (self.n + al - 1) // al * al
        r = self.n; self.n += k
        assert self.n <= 250, "out of VGPRs"
        return r

def load_weights(a, nch, src, trfun, after_first=None, preissued=False, tail_issue=None, op='xor'):
    if not preissued:
        for ch in range(min(4, nch)): dma_chunk(a, ch % 4, src(ch), op)
    extra = 0
    for ch in range(nch):
        a(f"s_waitcnt vmcnt({min(24, (nch - 1 - ch) * 8 + extra)})")
        if ch == 0 and after_first: after_first()
        for (areg, vaddr, off) in trfun(ch):
            a(f"ds_read_b64_tr_b16 a[{areg}:{areg+1}], v{vaddr} offset:{(ch % 4) * 8192 + off}")
        a("s_waitcnt lgkmcnt(0)")
        if ch + 4 < nch: dma_chunk(a, ch % 4, src(ch + 4), op)
        elif tail_issue:
            tail_issue(ch % 4); extra += 8

def dma_chunk(a, slot, sr_, op):
    sM, sO = S_G, S_G + 1
    srdn, voff, soff, offs = sr_
    a(f"s_lshl_b32 s{sM}, s{S_W}, 15")
    a(f"s_add_u32 m0, s{sM}, {slot * 8192}")
    for i in range(8):
        a(f"s_{'xor_b32' if op == 'xor' else 'add_u32'} s{sO}, s{soff}, {offs[i]}")
        a(f"buffer_load_dwordx4 v{voff}, s[{srdn}:{srdn+3}], s{sO} offen lds")
        if i < 7: a("s_add_u32 m0, m0, 1024")

def arrive(a):
    l = a.label('arr')
    a("s_barrier")
    a(f"s_cmp_lg_u32 s{S_W}, 0\ns_cbranch_scc1 {l}")
    a(f"v_mov_b32 v250, 128\nv_mov_b32 v251, s{S_PAR}\ns_mov_b64 exec, 1")
    a(f"global_atomic_add v250, v251, s[{P_DBG}:{P_DBG+1}]")
    a("s_mov_b64 exec, -1")
    a(f"{l}:")

def wait_all_arrived(a):
    l = a.label('wall'); d = a.label('walld')
    a("v_mov_b32 v250, 128")
    a(f"{l}:")
    a(f"global_load_dword v251, v250, s[{P_DBG}:{P_DBG+1}] sc1\ns_waitcnt vmcnt(0)")
    a(f"v_readfirstlane_b32 s{S_PAR}, v251")
    a(f"s_and_b32 s{S_G}, s{S_PAR}, 0x1ff\ns_cmp_eq_u32 s{S_G}, 256\ns_cbranch_scc1 {d}")
    a(f"s_sleep 4\ns_sub_u32 s{S_BUD}, s{S_BUD}, 1\ns_cbranch_scc0 {l}\ns_branch L_abort")
    a(f"{d}:")
    a(f"s_and_b32 s{S_PAR}, s{S_PAR}, 0x2000")

import struct
def f32bits(x): return struct.unpack('<I', struct.pack('<f', x))[0]
```

```python
from common import *
import math

def gen_rec(a, o):
    stamps = o.get('stamps', False)
    GAP = o.get('gap', 8)
    ES = o.get('es', 2); EO = o.get('eo', 0)
    assert not (ES == 2 and EO)
    V = VAlloc(1)
    vIdx = V(); vLdA = V(); vL16 = V(); vT0 = V(); vT1 = V(); vT2 = V(); vT3 = V()
    vA = V(16, 4)
    aQ = [V(4, 4), V(4, 4)]; aK = [V(4, 4), V(4, 4)]; aV = [V(4, 4), V(4, 4)]; aW = [V(4, 4), V(4, 4)]
    vP = [V(4, 4), V(4, 4)]
    vSel = V(4, 4); vSelV = V(4, 4); vOnes = V(4, 4); vSelW = V(4, 4)
    vOut = V(4, 4); vPoison = V(4, 4)
    vF2 = [V(4, 4), V(4, 4)]
    vStA = V(); vStO = V(); vStX = V(); vStM = V(); vLdX = V(); vLdM = V()
    vLdC = [V(), V(), V()]; vStC = V()
    vLdK = [V()]; vLdV = [V()]; vFl = V(); vFlA = V()
    vVpW = V(); vVmW = V(); vKvmR = V(); vStKVM = V(); vFlM = V(); vPzA = V(); vPzS = V()
    vStamp = V(); vStampA = V()
    LAY = o.get('lay', 1)
    vLdAx = [vLdA, V(), V(), V()]
    vWq = V(); vWo = V(); vTrQ = V(); vTrV = V()
    vMx = V(2, 2)
    vEoS = V(); vEoL = V(); vEsS = V(); vEsL = V(); vStep = V(); vEp = V(4, 4)
    base = V(0, 4)
    vR = V(24, 4); vF = V(4, 4); vTm = V(4, 4); vTx = [V(4, 4), V(4, 4)]; vKx = [V(4, 4), V(4, 4)]
    vVx = vKx
    vSX = V(16, 4); vSM = V(4, 4)
    vVr = [V(4, 4), V(4, 4)]; vVm = [V(4, 4), V(4, 4)]
    vPf = V(4, 4); vPm = V(4, 4); vL = V(4, 4); vO = vF2
    NS = o.get('csets', 3)
    vC = base + 12
    assert vC + 12 * NS <= 250
    sS, sSlA, sSlAn, sSlO, sSlS, sSlC, sTag, sKV, sSeg, sPz, sScale = range(S_G + 4, S_G + 15)
    sRow, sRowO = S_G + 15, S_G + 16
    sH, sC = S_G + 17, S_G + 18
    sPzS = S_G + 19
    sRot = 101
    sFc = 28
    sOne, sCnt, sTgt = S_B0, S_B0 + 1, S_B0 + 2
    EC = o.get('ec', 0); EA = o.get('ea', 0)
    sStamp = S_G + 20
    QKP = LDS_MISC; VP = QKP + 8192; WP = VP + 4096; KVM = WP + 4096
    WS = f"s[{S_WS}:{S_WS+3}]"

    a("L_rec:")
    a(f"s_lshr_b32 s{sH}, s{S_J}, 2\ns_lshl_b32 s{S_G}, s{S_X}, 3\ns_add_u32 s{sH}, s{sH}, s{S_G}\ns_and_b32 s{sC}, s{S_J}, 3")
    ROT = o.get('rot', 15)
    a(f"s_and_b32 s{sRot}, s{S_J}, {ROT}\ns_lshl_b32 s{S_G}, s{S_W}, 2\ns_xor_b32 s{sRot}, s{sRot}, s{S_G}")
    a(f"v_and_b32 v{vT0}, 7, v0\nv_bfe_u32 v{vT1}, v0, 3, 1\nv_lshrrev_b32 v{vT2}, 4, v0\nv_lshlrev_b32 v{vL16}, 4, v0")
    a(f"v_mov_b32 v{vPoison}, -1\nv_mov_b32 v{vPoison+1}, -1\nv_mov_b32 v{vPoison+2}, -1\nv_mov_b32 v{vPoison+3}, -1")
    a(f"s_lshl_b32 s{S_G}, s{S_X}, 15\ns_add_u32 s{S_G}, s{S_G}, {WS_RA}\ns_lshl_b32 s{S_G+1}, s{S_J}, 10\ns_add_u32 s{S_G+1}, s{S_G+1}, s{S_G}")
    a(f"v_lshlrev_b32 v{vT3}, 8, v{vT2}\nv_add_u32 v{vT3}, s{S_G+1}, v{vT3}")
    a(f"v_and_b32 v{vStA}, 15, v0\nv_lshl_add_u32 v{vStA}, v{vStA}, 3, v{vT3}")
    a(f"v_lshl_add_u32 v{vStO}, v{vT0}, 4, v{vT3}\nv_lshl_add_u32 v{vStO}, v{vT1}, 31, v{vStO}")
    a(f"s_lshl_b32 s{S_G+2}, s{sRot}, 11\ns_add_u32 s{S_G+2}, s{S_G+2}, s{S_G}")
    a(f"v_lshrrev_b32 v{vT3}, 3, v0\nv_lshlrev_b32 v{vT3}, 8, v{vT3}\nv_lshl_add_u32 v{vT3}, v{vT0}, 4, v{vT3}\nv_add_u32 v{vLdA}, s{S_G+2}, v{vT3}")
    for t in range(1, 4): a(f"v_xor_b32 v{vLdAx[t]}, {t * 2048}, v{vLdA}")
    a(f"v_add_u32 v{vPzA}, s{S_G+1}, v{vL16}")
    a(f"s_lshl_b32 s{S_G+2}, s{sH}, 13\ns_add_u32 s{S_G+2}, s{S_G+2}, {WS_RS}")
    a(f"v_add_u32 v{vLdX}, s{S_G+2}, v{vL16}")
    a(f"s_lshl_b32 s{S_G+3}, s{sC}, 10\nv_add_u32 v{vPzS}, s{S_G+3}, v{vLdX}\nv_lshl_add_u32 v{vStX}, v{vT1}, 31, v{vPzS}")
    a(f"v_lshlrev_b32 v{vT3}, 2, v0\ns_add_u32 s{S_G+2}, s{S_G+2}, 4096\nv_add_u32 v{vLdM}, s{S_G+2}, v{vT3}")
    a(f"s_lshl_b32 s{S_G+3}, s{sC}, 8\ns_add_u32 s{S_G+2}, s{S_G+2}, s{S_G+3}")
    a(f"v_and_b32 v{vT3}, 1, v{vT2}\nv_lshlrev_b32 v{vT3}, 4, v{vT3}\nv_lshl_add_u32 v{vT3}, v{vT0}, 5, v{vT3}\nv_add_u32 v{vStM}, s{S_G+2}, v{vT3}")
    a(f"v_xor_b32 v{vT3}, 8, v0\nv_and_b32 v{vT3}, 40, v{vT3}\nv_min_u32 v{vT3}, 1, v{vT3}\nv_lshl_add_u32 v{vStM}, v{vT3}, 31, v{vStM}")
    a(f"s_lshr_b32 s{S_G+2}, s{S_J}, 1\ns_lshl_b32 s{S_G+2}, s{S_G+2}, 14\ns_and_b32 s{S_G+3}, s{S_J}, 1\ns_lshl_b32 s{S_G+3}, s{S_G+3}, 12")
    a(f"s_add_u32 s{S_G+2}, s{S_G+2}, s{S_G+3}\ns_lshl_b32 s{S_G+3}, s{S_X}, 10\ns_add_u32 s{S_G+2}, s{S_G+2}, s{S_G+3}\ns_add_u32 s{S_G+2}, s{S_G+2}, {WS_RC}")
    a(f"v_add_u32 v{vStC}, s{S_G+2}, v{vL16}")
    for k in range(3): a(f"v_xor_b32 v{vLdC[k]}, {(k+1)*1024}, v{vStC}")
    a(f"s_lshr_b32 s{S_G+2}, s{S_J}, 3\ns_lshl_b32 s{S_G+2}, s{S_G+2}, 14\ns_and_b32 s{S_G+3}, s{S_J}, 7\ns_lshl_b32 s{S_G+3}, s{S_G+3}, 10")
    a(f"s_add_u32 s{S_G+2}, s{S_G+2}, s{S_G+3}\ns_lshl_b32 s{S_G+3}, s{S_X}, 8\ns_add_u32 s{S_G+2}, s{S_G+2}, s{S_G+3}\ns_add_u32 s{sFc}, s{S_G+2}, {WS_FC}")
    a(f"s_lshl_b32 s{S_G+2}, s{S_X}, 5\ns_add_u32 s{S_G+2}, s{S_G+2}, s{S_J}\ns_lshl_b32 s{S_G+3}, s{S_G+2}, 11")
    a(f"v_lshl_add_u32 v{vT3}, v{vT1}, 4, v{vT0}\nv_lshlrev_b32 v{vT3}, 4, v{vT3}\nv_lshl_add_u32 v{vT3}, v{vT2}, 9, v{vT3}")
    a(f"v_add_u32 v{vLdK[0]}, s{S_G+3}, v{vT3}")
    a(f"v_bfe_u32 v{vT3}, v0, 2, 2\nv_and_b32 v{vVmW}, 3, v0\nv_lshl_add_u32 v{vVmW}, v{vT3}, 3, v{vVmW}\nv_lshlrev_b32 v{vVmW}, 4, v{vVmW}")
    a(f"v_lshl_add_u32 v{vT3}, v{vT2}, 9, v{vVmW}\ns_add_u32 s{S_G+3}, s{S_G+3}, {WS_VX}\nv_add_u32 v{vLdV[0]}, s{S_G+3}, v{vT3}")
    a(f"v_lshl_add_u32 v{vVmW}, v{vT2}, 2, v{vVmW}\nv_add_u32 v{vVmW}, {KVM + 1024}, v{vVmW}")
    a(f"v_lshrrev_b32 v{vT3}, 3, v0\nv_lshlrev_b32 v{vT3}, 8, v{vT3}\nv_lshl_add_u32 v{vT3}, v{vT0}, 4, v{vT3}\nv_add_u32 v{vT3}, {KVM + 128}, v{vT3}")
    a(f"v_add_u32 v{vKvmR}, {KVM + 512}, v{vL16}\nv_cmp_gt_u32 vcc, 32, v0\nv_cndmask_b32 v{vKvmR}, v{vKvmR}, v{vT3}, vcc")
    a(f"s_lshl_b32 s{S_G+3}, s{S_G+2}, 10\ns_add_u32 s{S_G+3}, s{S_G+3}, {WS_KVM}\nv_add_u32 v{vStKVM}, s{S_G+3}, v{vL16}")
    a(f"s_lshl_b32 s{S_G+3}, s{sH}, 7\ns_add_u32 s{S_G+3}, s{S_G+3}, {FL_KV}\ns_lshl_b32 s{S_G+2}, s{S_W}, 1\ns_add_u32 s{S_G+2}, s{S_G+2}, s{S_G+3}\nv_mov_b32 v{vFlA}, s{S_G+2}\ns_lshl_b32 s{S_G+2}, s{sC}, 3\nv_add_u32 v{vFlA}, s{S_G+2}, v{vFlA}")
    a(f"s_lshl_b32 s{S_G+2}, s{sC}, 2\ns_add_u32 s{S_G+3}, s{S_G+3}, s{S_G+2}\ns_add_u32 s{S_G+3}, s{S_G+3}, {FL_M - FL_KV}")
    a(f"v_mov_b32 v{vFlM}, s{S_G+3}\nv_cmp_eq_u32 vcc, 0, v0\nv_mov_b32 v{vT3}, {OOB}\nv_cndmask_b32 v{vFlM}, v{vT3}, v{vFlM}, vcc")
    ER = o.get('erep', 4)
    a(f"s_lshl_b32 s{S_G+2}, s{S_X}, 11\ns_add_u32 s{S_G+2}, s{S_G+2}, {FL_EO}\ns_lshl_b32 s{S_G+3}, s{S_J}, 2\ns_add_u32 s{S_G+3}, s{S_G+3}, s{S_G+2}")
    a(f"v_lshlrev_b32 v{vEoS}, 8, v0\nv_add_u32 v{vEoS}, s{S_G+3}, v{vEoS}\nv_cmp_gt_u32 vcc, {ER}, v0\nv_cndmask_b32 v{vEoS}, v{vT3}, v{vEoS}, vcc")
    a(f"s_and_b32 s{S_G+3}, s{S_J}, {ER-1}\ns_lshl_b32 s{S_G+3}, s{S_G+3}, 8\ns_add_u32 s{S_G+3}, s{S_G+3}, s{S_G+2}")
    a(f"v_and_b32 v{vEoL}, 31, v0\nv_lshlrev_b32 v{vEoL}, 2, v{vEoL}\nv_add_u32 v{vEoL}, s{S_G+3}, v{vEoL}")
    a(f"s_lshl_b32 s{S_G+2}, s{sH}, 8\ns_add_u32 s{S_G+2}, s{S_G+2}, {FL_ES}\ns_lshl_b32 s{S_G+3}, s{sC}, 2\ns_add_u32 s{S_G+3}, s{S_G+3}, s{S_G+2}")
    a(f"v_mov_b32 v{vEsS}, s{S_G+3}\nv_cmp_eq_u32 vcc, 0, v0\nv_cndmask_b32 v{vEsS}, v{vT3}, v{vEsS}, vcc")
    a(f"v_and_b32 v{vEsL}, 3, v0\nv_lshlrev_b32 v{vEsL}, 2, v{vEsL}\nv_add_u32 v{vEsL}, s{S_G+2}, v{vEsL}")
    a(f"s_lshr_b32 s{S_G+2}, s{S_W}, 1\ns_lshl_b32 s{S_G+2}, s{S_G+2}, 10\ns_and_b32 s{S_G+3}, s{S_W}, 1\ns_lshl_b32 s{S_G+3}, s{S_G+3}, 3")
    a(f"s_add_u32 s{S_G+2}, s{S_G+2}, s{S_G+3}\ns_add_u32 s{S_G+2}, s{S_G+2}, {VP}\nv_add_u32 v{vVpW}, s{S_G+2}, v{vL16}")
    a(f"v_add_u32 v{vL16}, {LDS_MISC}, v{vL16}")
    a(f"v_mov_b32 v{vIdx}, 0x4444\nv_mul_u32_u24 v{vT3}, 0xaaaa, v{vT1}\nv_add_u32 v{vIdx}, v{vIdx}, v{vT3}")
    a(f"v_and_b32 v{vA}, 15, v0\nv_and_b32 v{vA+1}, 1, v{vT2}\nv_lshlrev_b32 v{vA+1}, 2, v{vA+1}\nv_sub_u32 v{vA+2}, v{vA}, v{vA+1}")
    a(f"v_mov_b32 v{vA+4}, 0x3f80\nv_mov_b32 v{vA+5}, 0x3f800000")
    for p in range(4):
        t = 8 * (p >> 1) + 2 * (p & 1)
        a(f"v_cmp_eq_u32 vcc, {t}, v{vA+2}\nv_cndmask_b32 v{vSel+p}, 0, v{vA+4}, vcc")
        a(f"v_cmp_eq_u32 vcc, {t+1}, v{vA+2}\nv_cndmask_b32 v{vSel+p}, v{vSel+p}, v{vA+5}, vcc")
    a(f"v_lshrrev_b32 v{vA+3}, 2, v{vA}\nv_and_b32 v{vA+6}, 1, v{vA}\nv_lshl_add_u32 v{vA+3}, v{vA+3}, 1, v{vA+6}")
    a(f"v_and_b32 v{vA+6}, 2, v{vA}\nv_lshl_add_u32 v{vA+3}, v{vA+6}, 5, v{vA+3}\nv_sub_u32 v{vA+3}, v{vA+3}, v{vA+1}")
    for p in range(4):
        t = 2 * (p & 1)
        a(f"v_cmp_eq_u32 vcc, {t}, v{vA+3}\nv_cndmask_b32 v{vSelV+p}, 0, v{vA+4}, vcc")
        a(f"v_cmp_eq_u32 vcc, {t+1}, v{vA+3}\nv_cndmask_b32 v{vSelV+p}, v{vSelV+p}, v{vA+5}, vcc")
    a(f"v_sub_u32 v{vA+2}, v{vA+2}, v{vA+1}")
    for p in range(4):
        t = 4 * (p & 1) + (p >> 1)
        a(f"v_cmp_eq_u32 vcc, {t}, v{vA+2}\nv_cndmask_b32 v{vSelW+p}, 0, v{vA+4}, vcc")
        a(f"v_cmp_eq_u32 vcc, {t+2}, v{vA+2}\nv_cndmask_b32 v{vSelW+p}, v{vSelW+p}, v{vA+5}, vcc")
    for p in range(4): a(f"v_mov_b32 v{vOnes+p}, 0x3f803f80")
    a(f"s_mov_b32 s{sScale}, {hex(f32bits(128 ** -0.5 * math.log2(math.e)))}")

    a(f"s_lshl_b32 s{S_G}, s{S_W}, 17\ns_lshl_b32 s{S_G+1}, s{S_W}, 18")
    a(f"buffer_store_dwordx4 v[{vPoison}:{vPoison+3}], v{vPzA}, {WS}, s{S_G} offen")
    a(f"buffer_store_dwordx4 v[{vPoison}:{vPoison+3}], v{vPzS}, {WS}, s{S_G+1} offen")
    a(f"buffer_store_dwordx4 v[{vPoison}:{vPoison+3}], v{vStM}, {WS}, s{S_G+1} offen")
    a(f"s_lshr_b32 s{S_G}, s{S_W}, 1\ns_lshl_b32 s{S_G}, s{S_G}, 18\ns_and_b32 s{S_G+1}, s{S_W}, 1\ns_lshl_b32 s{S_G+1}, s{S_G+1}, 13\ns_add_u32 s{S_G}, s{S_G}, s{S_G+1}")
    a(f"buffer_store_dwordx4 v[{vPoison}:{vPoison+3}], v{vStC}, {WS}, s{S_G} offen sc1")
    l = a.label('m0')
    a(f"s_cmp_lg_u32 s{S_W}, 0\ns_cbranch_scc1 {l}")
    a(f"v_mov_b32 v{vT3}, 0\nbuffer_store_dword v{vT3}, v{vFlM}, {WS}, 0 offen sc1")
    a(f"buffer_store_dword v{vT3}, v{vEoS}, {WS}, 0 offen\nbuffer_store_dword v{vT3}, v{vEsS}, {WS}, 0 offen")
    a(f"buffer_store_dword v{vT3}, v{vEoS}, {WS}, 0 offen offset:128")
    a(f"v_and_b32 v{vOut}, 1, v0\nv_lshlrev_b32 v{vOut}, 13, v{vOut}\nbuffer_store_dword v{vT3}, v{vOut}, {WS}, s{sFc} offen sc1")
    srd(a, S_T, P_MEM0, 16384)
    a(f"v_bfe_u32 v{vT3}, v0, 1, 3\nv_lshlrev_b32 v{vT3}, 11, v{vT3}\nv_lshl_add_u32 v{vT3}, v{vT2}, 4, v{vT3}\nv_and_b32 v{vOut}, 1, v0\nv_lshl_add_u32 v{vT3}, v{vOut}, 3, v{vT3}\ns_lshl_b32 s{S_G}, s{S_J}, 6")
    a(f"buffer_load_dwordx2 v[{vOut}:{vOut+1}], v{vT3}, s[{S_T}:{S_T+3}], s{S_G} offen\ns_waitcnt vmcnt(0)")
    a(f"v_min_u32 v{vOut}, -2, v{vOut}\nv_min_u32 v{vOut+1}, -2, v{vOut+1}")
    a(f"buffer_store_dwordx2 v[{vOut}:{vOut+1}], v{vStA}, {WS}, 0 offen")
    a(f"{l}:")

    for b, p in enumerate((P_WQ, P_WK, P_WV, P_WO)): srd(a, S_B0 + 4 * b, p, 8 << 20)
    a(f"v_lshrrev_b32 v{vT3}, 2, v0\nv_and_b32 v{vWo}, 3, v0\nv_lshlrev_b32 v{vWo}, 4, v{vWo}")
    a(f"v_lshl_add_u32 v{vWq}, v{vT3}, 13, v{vWo}\nv_lshl_add_u32 v{vWo}, v{vT3}, 11, v{vWo}")
    a(f"s_lshl_b32 s{sRow}, s{sRot}, 19\ns_lshl_b32 s{S_G}, s{S_X}, 11\ns_add_u32 s{sRow}, s{sRow}, s{S_G}\ns_lshl_b32 s{S_G}, s{S_J}, 6\ns_add_u32 s{sRow}, s{sRow}, s{S_G}")
    a(f"s_lshl_b32 s{sRowO}, s{S_X}, 21\ns_add_u32 s{sRowO}, s{sRowO}, s{S_G}\ns_lshl_b32 s{S_G}, s{sRot}, 17\ns_add_u32 s{sRowO}, s{sRowO}, s{S_G}")
    a(f"v_lshrrev_b32 v{vA}, 5, v0\nv_lshlrev_b32 v{vA}, 4, v{vA}\nv_lshl_add_u32 v{vA}, v{vT1}, 3, v{vA}")
    a(f"v_and_b32 v{vA+1}, 1, v{vT2}\nv_lshl_add_u32 v{vA}, v{vA+1}, 2, v{vA}\nv_bfe_u32 v{vA+1}, v0, 2, 1\nv_add_u32 v{vA}, v{vA}, v{vA+1}")
    a(f"v_lshlrev_b32 v{vA}, 6, v{vA}\ns_lshl_b32 s{S_G}, s{S_W}, 15\nv_add_u32 v{vA}, s{S_G}, v{vA}")
    a(f"v_and_b32 v{vA+1}, 3, v0\nv_lshl_add_u32 v{vTrV}, v{vA+1}, 4, v{vA}")
    a(f"v_and_b32 v{vA+1}, 1, v0\nv_lshl_add_u32 v{vTrQ}, v{vA+1}, 3, v{vA}\nv_bfe_u32 v{vA+1}, v0, 1, 1\nv_lshl_add_u32 v{vTrQ}, v{vA+1}, 5, v{vTrQ}")
    def wreg(blk, t, tile): return blk * 64 + (t * 2 + tile) * 8
    def trfun(ch):
        blk, half = ch // 2, ch % 2
        out = []
        for tt in range(2):
            for tile in range(2):
                for p in range(4):
                    row = 64 * tt + 32 * (p >> 1) + 2 * (p & 1)
                    if blk < 2: out.append((wreg(blk, 2 * half + tt, tile) + 2 * p, vTrQ, row * 64 + tile * 16))
                    else:       out.append((wreg(blk, 2 * half + tt, tile) + 2 * p, vTrV, row * 64 + tile * 8))
        return out
    def src(ch):
        blk = ch // 2; pitch = 8192 if blk < 3 else 2048
        return (S_B0 + 4 * blk, vWq if blk < 3 else vWo, sRow if blk < 3 else sRowO, [((ch % 2) * 128 + 16 * i) * pitch for i in range(8)])
    load_weights(a, 8, src, trfun, after_first=lambda: arrive(a))
    wait_all_arrived(a)
    a(f"s_add_u32 s{sFc}, s{sFc}, s{S_PAR}")
    for k in range(1, 4): a(f"s_xor_b32 s{sFc+k}, s{sFc}, {256*k}")
    a(f"s_mov_b32 s{sOne}, 1\ns_mov_b32 s{sCnt}, 0\ns_mov_b32 s{sTgt}, 0")
    if stamps:
        a(f"s_lshl_b32 s{S_G}, s{S_X}, 5\ns_add_u32 s{S_G}, s{S_G}, s{S_J}\ns_lshl_b32 s{S_G}, s{S_G}, 2\ns_add_u32 s{S_G}, s{S_G}, s{S_W}\ns_lshl_b32 s{S_G}, s{S_G}, 12")
        a(f"s_add_u32 s{S_G}, s{S_G}, {WS_DBG}\nv_lshlrev_b32 v{vStampA}, 2, v0\nv_add_u32 v{vStampA}, s{S_G}, v{vStampA}")
        a(f"v_cmp_gt_u32 vcc, 16, v0\nv_mov_b32 v{vT3}, {OOB}\nv_cndmask_b32 v{vStampA}, v{vT3}, v{vStampA}, vcc\nv_mov_b32 v{vStamp}, 0")
    a(f"s_mov_b32 s{sS}, 0\ns_mov_b32 s{sKV}, 0\ns_mov_b32 s{sSeg}, 0")
    for w in (1, 2, 3): a(f"s_cmp_eq_u32 s{S_W}, {w}\ns_cbranch_scc1 L_rec_w{w}")

    NST = 8
    STN = o.get('stn', ['top', 'qk', 'B1', 'Sst', 'Sok', 'B3', 'wo', 'B4'])
    def stamp(name):
        if stamps and name in STN:
            k = STN.index(name); a(f"s_memtime s[{sStamp+2*k}:{sStamp+2*k+1}]")
        if stamps and 'R' + name in STN:
            k = STN.index('R' + name); a(f"s_memrealtime s[{sStamp+2*k}:{sStamp+2*k+1}]")
    def flush_stamps():
        if not stamps: return
        a("s_waitcnt lgkmcnt(0)")
        for k in range(NST): a(f"v_writelane_b32 v{vStamp}, s{sStamp+2*k}, {k}")
        a(f"v_writelane_b32 v{vStamp}, s{S_BUD}, 15")
        a(f"s_lshl_b32 s{S_G}, s{sS}, 6\nbuffer_store_dword v{vStamp}, v{vStampA}, {WS}, s{S_G} offen")

    def smf(acc, t, blk, tile):
        w = wreg(blk, t, tile)
        a(f"v_smfmac_f32_16x16x64_bf16 v[{acc}:{acc+3}], v[{vA+4*t}:{vA+4*t+3}], a[{w}:{w+7}], v{vIdx}")
    def mfma(d, A, B, c0=False):
        a(f"v_mfma_f32_16x16x32_bf16 v[{d}:{d+3}], v[{A}:{A+3}], v[{B}:{B+3}], " + ("0" if c0 else f"v[{d}:{d+3}]"))
    def cvt(d, s0, s1): a(f"v_cvt_pk_bf16_f32 v{d}, v{s0}, v{s1}")

    def nops(n):
        while n > 0:
            k = min(n, 16); a(f"s_nop {k-1}"); n -= k

    sD = S_G + 2
    def gather(sOff, work, tails, delay, nm, split, shadow=None):
        nops(delay)
        stamp(nm + 'ld')
        ld = lambda t: f"buffer_load_dwordx4 v[{vA+4*t}:{vA+4*t+3}], v{vLdAx[t]}, {WS}, s{sOff} offen sc1"
        for t in range(4):
            a(ld(t))
            if t < 3: nops(GAP)
        ent = [a.label('ge') for _ in range(4)]; blk = [a.label('gb') for _ in range(4)]; fin = a.label('gx'); p2 = a.label('gp')
        def chk(t, st=True):
            a(f"s_waitcnt vmcnt({3-t})")
            if st: stamp(nm + str(t))
            a(f"v_cmp_eq_u32 vcc, -1, v{vA+4*t}")
        if shadow: shadow()
        chk(0)
        for t in range(4):
            a(f"{blk[t]}:")
            a(f"s_cbranch_vccnz {ent[t]}")
            ws = work(t)
            if t < 3:
                for f in ws[:split]: f()
                chk(t + 1)
                for f in ws[split:]: f()
            else:
                for f in ws: f()
        a(f"{fin}:")
        def slow():
            sb = [a.label('gs') for _ in range(4)]
            for t in range(4):
                a(f"{ent[t]}:")
                if t:
                    a("s_mov_b64 exec, 1")
                    for u in range(t): a(ld(u))
                a(f"s_mov_b64 exec, vcc\n{ld(t)}\ns_mov_b64 exec, -1\ns_mov_b32 s{sD}, {(1 << t) - 1}")
                if t < 3: a(f"s_branch {sb[t+1]}")
            for t in range(4):
                nx = a.label('gn')
                a(f"{sb[t]}:")
                a(f"s_waitcnt vmcnt(3)\nv_cmp_eq_u32 vcc, -1, v{vA+4*t}\ns_bitcmp1_b32 s{sD}, {t}\ns_cbranch_scc1 {nx}\ns_cbranch_vccnz {nx}")
                ws = work(t)
                ws[0]()
                a(f"s_bitset1_b32 s{sD}, {t}\ns_cmp_eq_u32 s{sD}, 15")
                for f in ws[1:]: f()
                a(f"s_cbranch_scc1 {fin}")
                a(f"{nx}:")
                a(f"s_or_b64 exec, vcc, 1\n{ld(t)}\ns_mov_b64 exec, -1")
            a(f"s_sub_u32 s{S_BUD}, s{S_BUD}, 1\ns_cbranch_scc0 {sb[0]}\ns_branch L_abort")
        tails.append(slow)

    def kv_check(tails):
        lp = a.label('kvp'); lo = a.label('kvo')
        a(f"s_lshr_b32 s{S_G}, s{sSeg}, 18\nv_readfirstlane_b32 s{sKV}, v{vFl}")
        a(f"s_cmp_le_u32 s{sKV}, s{S_G}\ns_cbranch_scc1 {lp}")
        a(f"{lo}:")
        tails.append(f"{lp}:\nbuffer_load_dword v{vFl}, v{vFlA}, {WS}, 0 offen sc1\ns_sub_u32 s{S_BUD}, s{S_BUD}, 1\ns_cbranch_scc1 L_abort\n"
                     f"s_waitcnt vmcnt(0)\nv_readfirstlane_b32 s{sKV}, v{vFl}\ns_nop 0\ns_cmp_le_u32 s{sKV}, s{S_G}\ns_cbranch_scc1 {lp}\ns_branch {lo}")
    def kv_load(vLd, step):
        for t in range(2):
            a(f"buffer_load_dwordx4 v[{vKx[t]}:{vKx[t]+3}], v{vLd}, {WS}, s{sSeg} offen offset:{step*t} sc1")
        a(f"buffer_load_dword v{vFl}, v{vFlA}, {WS}, 0 offen sc1")
        a(f"s_add_u32 s{sSeg}, s{sSeg}, 0x40000")

    sSlOld = S_G + 1
    def slots():
        for f in [f"s_and_b32 s{S_G}, s{sS}, 3", f"s_lshl_b32 s{sSlS}, s{S_G}, 18", f"s_lshl_b32 s{sSlO}, s{S_G}, 17",
                  f"s_xor_b32 s{sPz}, s{sSlO}, 0x40000", f"s_xor_b32 s{sPzS}, s{sSlS}, 0x80000",
                  f"s_add_u32 s{sSlAn}, s{sSlO}, 0x20000", f"s_and_b32 s{sSlAn}, s{sSlAn}, 0x60000",
                  f"s_and_b32 s{sSlC}, s{sSlS}, 0x40000", f"s_add_u32 s{sSlC}, s{sSlC}, s{S_PAR}", f"s_lshr_b32 s{sTag}, s{S_G}, 1",
                  f"s_add_u32 s{sSlOld}, s{sSlO}, 128", f"s_add_u32 s{S_G}, s{sS}, 1", f"v_mov_b32 v{vStep}, s{S_G}"]: a(f)
    def zero(rs):
        for r in rs:
            for i in range(4): a(f"v_mov_b32 v{r+i}, 0")
    def pk(op, d, x, y, mods=""): a(f"v_pk_{op}_f32 v[{d}:{d+1}], v[{x}:{x+1}], v[{y}:{y+1}] {mods}")
    def eflag_wait(vAddr, vE, depth, pace, off=0):
        lp = a.label('ep')
        a(f"{lp}:")
        a(f"buffer_load_dword v{vE}, v{vAddr}, {WS}, 0 offen offset:{off} sc1")
        nops(pace)
        a(f"s_waitcnt vmcnt({depth})\nv_cmp_ge_u32 vcc, s{sS}, v{vE}\ns_sub_u32 s{S_BUD}, s{S_BUD}, 1\ns_cbranch_scc1 L_abort\ns_cbranch_vccnz {lp}")
    def kvm_store():
        a(f"buffer_store_dwordx4 v[{vOut}:{vOut+3}], v{vStKVM}, {WS}, s{S_G} offen sc1")
        a(f"buffer_store_dword v{vT0}, v{vFlM}, {WS}, 0 offen sc1")

    BGE = o.get('bge', 1)
    def background(w):
        if o.get('nokv'): return
        if w == 0: kv_load(vLdK[0], 128)
        if w == 2: kv_load(vLdV[0], 64)
        if w == 3: kvm_store()
    for w in range(4):
        tails = []
        a(f"L_rec_w{w}:")
        if w in (0, 2):
            a(f"v_mov_b32 v{vFl}, 0")
            kv_check(tails); kv_load(vLdK[0] if w == 0 else vLdV[0], 128 if w == 0 else 64)
        if w == 2:
            zero([vVm[0], vVm[1], vPm])
            a(f"v_mov_b32 v{vMx}, s{sScale}\nv_mov_b32 v{vMx+1}, s{sScale}")
        zero(aQ + aK + aV + aW + [vEp])
        slots()
        a(f"s_mov_b32 s{sSlA}, 0")
        a(".p2align 6")
        a(f"L_rec_loop{w}:")
        a("s_barrier")
        stamp('top')
        workA = lambda t: [lambda: smf(aQ[0], t, 0, 0), lambda: smf(aK[0], t, 1, 0), lambda: smf(aQ[1], t, 0, 1), lambda: smf(aK[1], t, 1, 1)]
        gather(sSlA, workA, tails, o.get('adelay', 44), 'A', 2)
        stamp('qk')
        vs = [(aV[tile], t, 2, tile) for t in range(4) for tile in range(2)]
        for tile in range(2):
            cvt(vP[tile], aQ[tile], aQ[tile] + 1); cvt(vP[tile] + 1, aQ[tile] + 2, aQ[tile] + 3)
            cvt(vP[tile] + 2, aK[tile], aK[tile] + 1); cvt(vP[tile] + 3, aK[tile] + 2, aK[tile] + 3)
            if w: a(f"ds_write_b128 v{vL16}, v[{vP[tile]}:{vP[tile]+3}] offset:{w*2048 + tile*1024}")
            elif tile == 0: smf(*vs.pop(0))
        def vpart():
            for tile in range(2):
                cvt(vP[0] + 2 * tile, aV[tile], aV[tile] + 1); cvt(vP[0] + 2 * tile + 1, aV[tile] + 2, aV[tile] + 3)
            a(f"ds_write2st64_b64 v{vVpW}, v[{vP[0]}:{vP[0]+1}], v[{vP[0]+2}:{vP[0]+3}] offset0:0 offset1:4")
        if w:
            for _ in range(3): smf(*vs.pop(0))
            a("s_waitcnt lgkmcnt(0)\ns_barrier")
            if w == 3:
                if ES: a(f"buffer_store_dword v{vStep}, v{vEsS if ES == 1 else vEoS}, {WS}, 0 offen")
            while vs: smf(*vs.pop(0))
            vpart()
            if w == 1: slots()
            if w == 2 and ES: eflag_wait(vEsL if ES == 1 else vEoL, vEp, o.get('edepth', 8), o.get('epace', 0))
            a("s_waitcnt lgkmcnt(0)\ns_barrier")
            stamp('B2')
        else:
            mfma(vF2[0], vP[0], vSel, True); mfma(vF2[1], vP[1], vSel, True)
            for _ in range(4): smf(*vs.pop(0))
            a("s_barrier")
            stamp('B1')
            for i in range(6):
                a(f"ds_read_b128 v[{vR+4*i}:{vR+4*i+3}], v{vL16} offset:{2048 + 1024*i}")
                if i in (0, 2, 4): smf(*vs.pop(0))
            assert not vs
            for i in range(6):
                a(f"s_waitcnt lgkmcnt({5-i})")
                mfma(vF2[i & 1], vR + 4 * i, vSel)
                if i in (2, 3):
                    tile = i - 2
                    cvt(vP[0] + 2 * tile, aV[tile], aV[tile] + 1); cvt(vP[0] + 2 * tile + 1, aV[tile] + 2, aV[tile] + 3)
            a(f"ds_write2st64_b64 v{vVpW}, v[{vP[0]}:{vP[0]+1}], v[{vP[0]+2}:{vP[0]+3}] offset0:0 offset1:4")
            cvt(vF, vF2[0], vF2[0] + 1); cvt(vF + 1, vF2[0] + 2, vF2[0] + 3); cvt(vF + 2, vF2[1], vF2[1] + 1); cvt(vF + 3, vF2[1] + 2, vF2[1] + 3)
            mfma(vTx[0], vKx[0], vF, True); mfma(vTx[1], vKx[1], vF, True)
            a("s_waitcnt lgkmcnt(0)")
            mfma(vTm, vF, vF, True)
            a(f"buffer_store_dwordx4 v[{vTx[0]}:{vTx[0]+3}], v{vStX}, {WS}, s{sSlS} offen")
            a(f"buffer_store_dwordx4 v[{vTx[1]}:{vTx[1]+3}], v{vStX}, {WS}, s{sSlS} offen offset:128")
            a(f"buffer_store_dwordx4 v[{vTm}:{vTm+3}], v{vStM}, {WS}, s{sSlS} offen")
            stamp('Sst')
            a("s_barrier")
            a(f"ds_write_b128 v{vL16}, v[{vF}:{vF+3}] offset:{KVM - LDS_MISC}")
        if w != 2:
            a(f"s_cmp_eq_u32 s{sS}, 63\ns_cbranch_scc1 L_rec_fin{w}")
            zero(aQ + aK + aV)
            if w == 1: zero(aW)
            if w == 3 and EO:
                nops(o.get('eodelay', 40))
                eflag_wait(vEoL, vEp, o.get('edepth', 8), o.get('epace', 0))
                stamp('Eo')
            a("s_waitcnt lgkmcnt(0)\ns_barrier")
        else:
            def sloads():
                s = ""
                for c in range(4):
                    s += f"buffer_load_dwordx4 v[{vSX+4*c}:{vSX+4*c+3}], v{vLdX}, {WS}, s{sSlS} offen offset:{1024*c} sc1\n"
                    if c == 1:
                        for cc in range(4):
                            s += f"buffer_load_dword v{vSM+cc}, v{vLdM}, {WS}, s{sSlS} offen offset:{256*cc} sc1\n"
                return s
            for i in range(4):
                a(f"ds_read_b128 v[{vR+4*i}:{vR+4*i+3}], v{vL16} offset:{VP - LDS_MISC + 1024*i}")
            SD = o.get('ssets', 1)
            nops(o.get('sdelay', 6))
            stamp('Sld')
            a(sloads())
            for i in range(4):
                a(f"s_waitcnt lgkmcnt({3-i})")
                mfma(vVr[i >> 1], vSelV, vR + 4 * i, c0=(i & 1) == 0)
            if SD >= 3: a(sloads())
            for tile in range(2):
                cvt(vVm[tile], vVr[tile], vVr[tile] + 1)
                a(f"ds_write_b32 v{vVmW}, v{vVm[tile]} offset:{64*tile}")
            a(f"s_cmp_eq_u32 s{sS}, 63\ns_cbranch_scc1 L_rec_fin2")
            if SD >= 2:
                nops(o.get('sgap', 0)); a(sloads())
            ls = a.label('sw'); lr = a.label('srt'); lk = a.label('sok')
            a(f"{ls}:")
            t0, t1 = vTx[0], vTx[1]
            X = 8 * (SD - 1)
            a(f"s_waitcnt vmcnt({6+X})")
            stamp('S2')
            for i in (0, 2): pk('add', t0 + i, vSX + i, vSX + 4 + i)
            for i in (0, 2): pk('mul', t0 + i, t0 + i, vMx)
            a(f"s_waitcnt vmcnt({2+X})")
            pk('add', vTm, vSM, vSM + 2)
            a(f"v_add_f32 v{vTm}, v{vTm}, v{vTm+1}\nv_mul_f32 v{vTm}, s{sScale}, v{vTm}")
            a(f"s_waitcnt vmcnt({1+X})")
            for i in (0, 2): a(f"v_pk_fma_f32 v[{t0+i}:{t0+i+1}], v[{vSX+8+i}:{vSX+9+i}], v[{vMx}:{vMx+1}], v[{t0+i}:{t0+i+1}]")
            a(f"s_waitcnt vmcnt({X})")
            stamp('S8')
            for i in (0, 2): a(f"v_pk_fma_f32 v[{t0+i}:{t0+i+1}], v[{vSX+12+i}:{vSX+13+i}], v[{vMx}:{vMx+1}], v[{t0+i}:{t0+i+1}]")
            D = "row_mask:0xf bank_mask:0xf"
            a(f"v_maximum3_f32 v{vL}, v{t0}, v{t0+1}, v{vTm}")
            a(f"v_maximum3_f32 v{vL}, v{vL}, v{t0+2}, v{t0+3}")
            a(f"v_cmp_u_f32 vcc, v{vL}, v{vL}")
            a(f"v_max_f32_dpp v{vL}, v{vL}, v{vL} row_ror:8 {D}")
            a(f"v_mov_b32 v{vT1}, v{vL}\nv_permlane16_swap_b32 v{vL}, v{vT1}\nv_max_f32 v{vL}, v{vL}, v{vT1}")
            a(f"v_mov_b32 v{vT1}, v{vL}")
            a(f"s_cbranch_vccnz {lr}")
            a(f"{lk}:")
            if EO: a(f"buffer_store_dword v{vStep}, v{vEoS}, {WS}, 0 offen")
            tails.append(f"{lr}:\n" + sloads() + f"s_sub_u32 s{S_BUD}, s{S_BUD}, 1\ns_cbranch_scc0 {ls}\ns_branch L_abort")
            a(f"v_permlane32_swap_b32 v{vL}, v{vT1}\nv_max_f32 v{vL}, v{vL}, v{vT1}")
            stamp('Sok')
            for i in (0, 2): pk('add', t0 + i, t0 + i, vL, "op_sel_hi:[1,0] neg_lo:[0,1] neg_hi:[0,1]")
            a(f"v_sub_f32 v{vTm}, v{vTm}, v{vL}")
            for r in (t0, t0 + 1, t0 + 2, t0 + 3): a(f"v_exp_f32 v{r}, v{r}")
            cvt(vPf, t0, t0 + 1)
            a(f"v_exp_f32 v{vTm}, v{vTm}")
            cvt(vPf + 1, t0 + 2, t0 + 3)
            a(f"v_mov_b32_dpp v{vPf+2}, v{vPf} row_ror:8 {D}")
            a(f"v_mov_b32_dpp v{vT1}, v{vTm} row_ror:8 {D}")
            a(f"v_mov_b32_dpp v{vPf+3}, v{vPf+1} row_ror:8 {D}")
            cvt(vPm, vTm, vT1)
            mfma(vL, vOnes, vPf, True); mfma(vL, vOnes, vPm)
            mfma(vO[0], vVx[0], vPf, True); mfma(vO[0], vVm[0], vPm)
            mfma(vO[1], vVx[1], vPf, True)
            a(f"v_rcp_f32 v{vL}, v{vL}")
            mfma(vO[1], vVm[1], vPm)
            for tile in range(2):
                for i in (0, 2): pk('mul', vO[tile] + i, vO[tile] + i, vL, "op_sel_hi:[1,0]")
                cvt(vOut + 2 * tile, vO[tile], vO[tile] + 1); cvt(vOut + 2 * tile + 1, vO[tile] + 2, vO[tile] + 3)
            a(f"buffer_store_dwordx4 v[{vOut}:{vOut+3}], v{vStO}, {WS}, s{sSlOld} offen")
            stamp('Ost')
            a("s_waitcnt lgkmcnt(0)\ns_barrier")
        stamp('B3')
        workO = lambda t: [lambda: smf(aW[0], t, 3, 0), lambda: smf(aW[1], t, 3, 1)]
        def shadowO():
            if w in (0, 2) and not o.get('nokv'): kv_check(tails)
            if w == 3: a(f"ds_read_b128 v[{vOut}:{vOut+3}], v{vKvmR}\nv_mov_b32 v{vT0}, s{sS}\ns_lshl_b32 s{S_G}, s{sS}, 17\ns_waitcnt lgkmcnt(0)")
        gather(sSlOld, workO, tails, o.get('odelay', 28), 'O', o.get('osplit', 1), shadowO)
        stamp('wo')
        for tile in range(2):
            cvt(vP[0] + 2 * tile, aW[tile], aW[tile] + 1); cvt(vP[0] + 2 * tile + 1, aW[tile] + 2, aW[tile] + 3)
        if w != 1:
            a(f"ds_write_b128 v{vL16}, v[{vP[0]}:{vP[0]+3}] offset:{WP - LDS_MISC + 1024*w}")
            if BGE: background(w)
            a("s_waitcnt lgkmcnt(0)\ns_barrier")
            if w == 0 and EC:
                for k in range(1, 4): a(f"s_atomic_add s{sOne}, s[{P_WSP}:{P_WSP+1}], s{sFc+k}")
            if not BGE: background(w)
            stamp('B4')
            zero(aW)
            if w == 2: zero(aQ + aK + aV)
            if w == 3:
                nops(o.get('pzdelay', 32))
                a(f"buffer_store_dwordx4 v[{vPoison}:{vPoison+3}], v{vPzA}, {WS}, s{sPz} offen")
                a(f"buffer_store_dwordx4 v[{vPoison}:{vPoison+3}], v{vPzS}, {WS}, s{sPzS} offen")
                a(f"buffer_store_dwordx4 v[{vPoison}:{vPoison+3}], v{vStM}, {WS}, s{sPzS} offen")
            flush_stamps()
            a(f"s_mov_b32 s{sSlA}, s{sSlAn}\ns_add_u32 s{sS}, s{sS}, 1")
            slots()
            if w == 3 and EA:
                nops(o.get('eapd', 100))
                eflag_wait(vEoL, vEp + 1, o.get('edepth', 8), o.get('epace', 0), 128)
                stamp('Ea')
        else:
            mfma(vF2[0], vP[0], vSelW, True)
            a("s_barrier")
            stamp('B4')
            for i, ww in enumerate((0, 2, 3)):
                a(f"ds_read_b128 v[{vR+4*i}:{vR+4*i+3}], v{vL16} offset:{WP - LDS_MISC + 1024*ww}")
            for i in range(3):
                a(f"s_waitcnt lgkmcnt({2-i})")
                mfma(vF2[0], vR + 4 * i, vSelW)
            a(f"v_and_or_b32 v{vF2[0]}, v{vF2[0]}, -2, s{sTag}")
            a(f"buffer_store_dwordx4 v[{vF2[0]}:{vF2[0]+3}], v{vStC}, {WS}, s{sSlC} offen sc1")
            stamp('Cst')
            flush_stamps()
            a(f"s_mov_b32 s{sSlA}, s{sSlAn}\ns_add_u32 s{sS}, s{sS}, 1")
            def cl(st):
                return "\n".join(f"buffer_load_dwordx4 v[{vC+12*st+4*k}:{vC+12*st+4*k+3}], v{vLdC[k]}, {WS}, s{sSlC} offen {o.get('cflav', 'sc1')}" for k in range(3))
            if EC:
                lp = a.label('ec')
                a(f"s_add_u32 s{sTgt}, s{sTgt}, 3\nv_add_u32 v{vStep}, 1, v{vStep}")
                a(f"{lp}:")
                a(f"s_load_dword s{sCnt}, s[{P_WSP}:{P_WSP+1}], s{sFc} glc")
                nops(o.get('ecpace', 4))
                a(f"s_sub_u32 s{S_BUD}, s{S_BUD}, 1\ns_cbranch_scc1 L_abort\ns_cmp_lt_u32 s{sCnt}, s{sTgt}\ns_cbranch_scc1 {lp}")
                stamp('Ec')
            nops(o.get('cdelay', 64))
            stamp('Cld')
            for st in range(NS):
                a(cl(st))
                if st < NS - 1: nops(o.get('cgap', 42))
            if EA:
                assert NS == 1
                nops(o.get('easd', 60))
                a(f"buffer_store_dword v{vStep}, v{vEoS}, {WS}, 0 offen offset:128")
            lp = a.label('cp'); done = a.label('cd')
            if EA: a("s_waitcnt vmcnt(1)")
            a(f"{lp}:")
            for st in range(NS):
                b = vC + 12 * st
                if not EA: a(f"s_waitcnt vmcnt({3*(NS-1)})")
                a(f"v_bitop3_b32 v{vT0}, v{b}, v{b+4}, v{vF2[0]} bitop3:0x7e")
                a(f"v_bitop3_b32 v{vT0}, v{vT0}, v{b+8}, v{vF2[0]} bitop3:0xf6")
                a(f"v_and_b32 v{vT0}, 1, v{vT0}\nv_cmp_ne_u32 vcc, 0, v{vT0}")
                for i in (0, 2): pk('add', vF2[1] + i, vF2[0] + i, b + i)
                for i in (0, 2): pk('add', vP[1] + i, b + 4 + i, b + 8 + i)
                for i in (0, 2): pk('add', vF2[1] + i, vF2[1] + i, vP[1] + i)
                a(f"s_cbranch_vccz {done}")
                a(cl(st))
                nops(o.get('cpace', 0))
                if EA: a("s_waitcnt vmcnt(0)")
            a(f"s_sub_u32 s{S_BUD}, s{S_BUD}, 1\ns_cbranch_scc0 {lp}\ns_branch L_abort")
            a(f"{done}:")
            cvt(vOut, vF2[1], vF2[1] + 1); cvt(vOut + 1, vF2[1] + 2, vF2[1] + 3)
            a(f"buffer_store_dwordx2 v[{vOut}:{vOut+1}], v{vStA}, {WS}, s{sSlA} offen")
            stamp('Ast')
        a(f"s_branch L_rec_loop{w}")
        a(f"L_rec_fin{w}:")
        if w == 3: a(f"v_mov_b32 v{vT0}, 63\nbuffer_store_dword v{vT0}, v{vFlM}, {WS}, 0 offen sc1")
        a("s_waitcnt lgkmcnt(0)\ns_barrier")
        if w == 3:
            a(f"ds_read_b128 v[{vF2[0]}:{vF2[0]+3}], v{vKvmR}\ns_lshl_b32 s{S_G}, s{sS}, 17\ns_waitcnt lgkmcnt(0)")
            a(f"buffer_store_dwordx4 v[{vF2[0]}:{vF2[0]+3}], v{vStKVM}, {WS}, s{S_G} offen sc1")
            a(f"v_mov_b32 v{vT1}, 64\ns_waitcnt vmcnt(0)\nbuffer_store_dword v{vT1}, v{vFlM}, {WS}, 0 offen sc1")
        a("s_waitcnt vmcnt(0)\ns_endpgm")
        for t in tails:
            if callable(t): t()
            else: a(t)
```

```python
from common import *
import math

WS = f"s[{S_WS}:{S_WS+3}]"
SX = f"s[{S_T}:{S_T+3}]"
sS, sRow, sM0, sSrc, sK, sT0, sT1, sT2 = range(S_G + 4, S_G + 12)
sKey = S_G + 12
D = 8
LOG2E = math.log2(math.e)

def cvt(a, d, s0, s1): a(f"v_cvt_pk_bf16_f32 v{d}, v{s0}, v{s1}")
def pk(a, op, d, x, y, mods=""): a(f"v_pk_{op}_f32 v[{d}:{d+1}], v[{x}:{x+1}], v[{y}:{y+1}] {mods}")
def m32(a, d, A, B, c): a(f"v_mfma_f32_32x32x16_bf16 v[{d}:{d+15}], {A}, {B}, {c}")

def lane1(a, vd, s, vt):
    a(f"v_mov_b32 v{vd}, s{s}\nv_cmp_eq_u32 vcc, 0, v0\nv_mov_b32 v{vt}, {OOB}\nv_cndmask_b32 v{vd}, v{vt}, v{vd}, vcc")

def poll(a, vA, vD, sThr, sleep=2):
    lp = a.label('pl'); ok = a.label('pk')
    a(f"{lp}:")
    a(f"buffer_load_dword v{vD}, v{vA}, {WS}, 0 offen sc1\ns_waitcnt vmcnt(0)")
    a(f"v_cmp_ge_u32 vcc, {sThr}, v{vD}\ns_cbranch_vccz {ok}")
    a(f"s_sleep {sleep}\ns_sub_u32 s{S_BUD}, s{S_BUD}, 1\ns_cbranch_scc0 {lp}\ns_branch L_abort")
    a(f"{ok}:")

class Gemm:
    def __init__(self, a, V, otype):
        self.a = a; self.otype = otype
        self.vW = V(); self.vTr = V(); self.vSrc = V(); self.vT = V(); self.vU = V()
        self.vRd = [V() for _ in range(4)]
        self.acc = V(16, 4)
    def weights(self, ptr, pitch_log2, after_first, trxor=None):
        a = self.a; vT, vU = self.vT, self.vU
        srd(a, S_B0, ptr, 8 << 20)
        a(f"v_lshrrev_b32 v{vT}, 2, v0\nv_and_b32 v{self.vW}, 3, v0\nv_lshlrev_b32 v{self.vW}, 4, v{self.vW}\nv_lshl_add_u32 v{self.vW}, v{vT}, {pitch_log2}, v{self.vW}")
        a(f"v_lshrrev_b32 v{vT}, 5, v0\nv_bfe_u32 v{vU}, v0, 2, 2\nv_lshl_add_u32 v{vT}, v{vT}, {2 if self.otype else 3}, v{vU}\nv_lshlrev_b32 v{vT}, 6, v{vT}")
        a(f"v_bfe_u32 v{vU}, v0, 4, 1\nv_lshl_add_u32 v{vT}, v{vU}, 5, v{vT}\nv_and_b32 v{vU}, 3, v0\nv_lshl_add_u32 v{vT}, v{vU}, 3, v{vT}")
        if trxor is not None: a(f"v_xor_b32 v{vT}, s{trxor}, v{vT}")
        a(f"s_lshl_b32 s{S_G}, s{S_W}, 15\nv_add_u32 v{self.vTr}, s{S_G}, v{vT}")
        src = lambda ch: (S_B0, self.vW, sRow, [(128 * ch + 16 * i) << pitch_log2 for i in range(8)])
        tr = lambda ch: [(4 * (8 * ch + tt) + 2 * p, self.vTr, (16 * tt + (8 if self.otype else 4) * p) * 64) for tt in range(8) for p in range(2)]
        load_weights(a, 8, src, tr, after_first=after_first)
    def addrs(self):
        a = self.a; vT, vU = self.vT, self.vU
        if self.otype:
            a(f"v_lshlrev_b32 v{self.vRd[0]}, 4, v0\ns_lshl_b32 s{S_G}, s{S_W}, 10\nv_add_u32 v{self.vSrc}, s{S_G}, v{self.vRd[0]}")
            for k in range(1, 4): a(f"v_add_u32 v{self.vRd[k]}, {1024*k}, v{self.vRd[0]}")
        else:
            a(f"v_lshrrev_b32 v{vT}, 3, v0\ns_lshl_b32 s{S_G}, s{S_W}, 3\nv_add_u32 v{vT}, s{S_G}, v{vT}")
            a(f"v_lshrrev_b32 v{vU}, 1, v{vT}\nv_xor_b32 v{vU}, v{vU}, v0\nv_and_b32 v{vU}, 7, v{vU}\nv_lshlrev_b32 v{vU}, 4, v{vU}\nv_lshl_add_u32 v{self.vSrc}, v{vT}, 11, v{vU}")
            a(f"v_bfe_u32 v{vT}, v0, 1, 3\nv_lshrrev_b32 v{vU}, 5, v0\nv_xor_b32 v{vT}, v{vT}, v{vU}\nv_lshlrev_b32 v{vT}, 4, v{vT}")
            a(f"v_and_b32 v{vU}, 31, v0\nv_lshl_add_u32 v{self.vRd[0]}, v{vU}, 7, v{vT}")
            for k in range(1, 4): a(f"v_xor_b32 v{self.vRd[k]}, {32*k}, v{self.vRd[0]}")
        a(f"s_lshl_b32 s{sM0}, s{S_W}, 10")
    def dma(self):
        out = []
        for i in range(16):
            if self.otype:
                g = (f"s_mov_b32 m0, s{sM0}\ns_mov_b32 s{sK}, s{sSrc}" if i == 0 else f"s_add_u32 m0, m0, 4096\ns_add_u32 s{sK}, s{sK}, 4096")
                g += f"\nbuffer_load_dwordx4 v{self.vSrc}, {WS}, s{sK} offen sc1 lds"
            else:
                g = (f"s_mov_b32 m0, s{sM0}" if i == 0 else "s_add_u32 m0, m0, 3968")
                g += f"\nbuffer_load_dwordx4 v{self.vSrc}, {SX}, s{sSrc} offen offset:{128*i} lds"
            out.append(g)
        return out
    def compute(self, ring, swap, hooks):
        a = self.a
        rd = lambda t: a(f"ds_read_b128 v[{ring+4*(t%D)}:{ring+4*(t%D)+3}], v{self.vRd[t&3]} offset:{(t>>2)*4096}")
        for t in range(D - 1): rd(t)
        for t in range(64):
            a(f"s_waitcnt lgkmcnt({min(D - 2, 63 - t)})")
            W = f"a[{4*t}:{4*t+3}]"; X = f"v[{ring+4*(t%D)}:{ring+4*(t%D)+3}]"
            m32(a, self.acc, X if swap else W, W if swap else X, "0" if t == 0 else f"v[{self.acc}:{self.acc+15}]")
            if t + D - 1 < 64: rd(t + D - 1)
            for h in hooks.get(t, []): a(h)
    def toggle_read(self):
        for k in range(4): self.a(f"v_xor_b32 v{self.vRd[k]}, 0x10000, v{self.vRd[k]}")

def gen_kv(a, o):
    V = VAlloc(1); g = Gemm(a, V, False)
    ring = V(4 * D, 4); vP = V(8, 4); vSt = V(); vFl = V(); vVal = V(); vFy = V()
    a("L_kv:")
    a(f"s_and_b32 s{sT0}, s{S_X}, 1")
    a(f"s_lshl_b32 s{S_G}, s{S_J}, 7\ns_lshl_b32 s{S_G+1}, s{S_W}, 3\ns_add_u32 s{S_G}, s{S_G}, s{S_G+1}\ns_lshl_b32 s{S_G+1}, s{sT0}, 2\ns_add_u32 s{S_G}, s{S_G}, s{S_G+1}\ns_add_u32 s{S_G}, s{S_G}, {FL_KV}")
    lane1(a, vFl, S_G, g.vT)
    a(f"s_mul_i32 s{sT1}, s{sT0}, 28\ns_add_u32 s{sT1}, s{sT1}, s{S_J}\ns_lshl_b32 s{S_G}, s{sT1}, 2\ns_add_u32 s{S_G}, s{S_G}, {FL_Y + 256}")
    a(f"s_cmp_lt_u32 s{S_J}, 28\ns_cselect_b32 s{S_G}, s{S_G}, {OOB}")
    lane1(a, vFy, S_G, g.vT)
    a(f"v_mov_b32 v{vVal}, 0\nbuffer_store_dword v{vVal}, v{vFl}, {WS}, 0 offen sc1\nbuffer_store_dword v{vVal}, v{vFy}, {WS}, 0 offen sc1")
    a(f"s_lshl_b32 s{S_G}, s{S_J}, 13\ns_lshl_b32 s{S_G+1}, s{S_W}, 11\ns_add_u32 s{S_G}, s{S_G}, s{S_G+1}\ns_lshl_b32 s{S_G+1}, s{sT0}, 24\ns_add_u32 s{S_G}, s{S_G}, s{S_G+1}")
    assert WS_KX == 0 and WS_VX == 1 << 24
    a(f"v_lshlrev_b32 v{vSt}, 4, v0\nv_add_u32 v{vSt}, s{S_G}, v{vSt}")
    srd(a, S_T, P_X, 4 << 20)
    a(f"s_lshl_b32 s{sRow}, s{S_J}, 8\ns_lshl_b32 s{S_G}, s{S_W}, 6\ns_add_u32 s{sRow}, s{sRow}, s{S_G}")
    a(f"s_cmp_eq_u32 s{sT0}, 0\ns_cselect_b32 s{P_WQ}, s{P_WK}, s{P_WV}\ns_cselect_b32 s{P_WQ+1}, s{P_WK+1}, s{P_WV+1}")
    g.weights(P_WQ, 13, lambda: arrive(a))
    g.addrs()
    a(f"s_mov_b32 s{sS}, 0\ns_mov_b32 s{sSrc}, 0\ns_barrier")
    for h in g.dma(): a(h)
    a("s_waitcnt vmcnt(0)")
    a(f"s_cmp_eq_u32 s{sT0}, 0\ns_cbranch_scc0 L_v_loop")
    for kv in range(2):
        nm = "kv"[kv]
        a(f"L_{nm}_loop:")
        a(f"s_xor_b32 s{sM0}, s{sM0}, 0x10000\ns_add_u32 s{sSrc}, s{sSrc}, 0x10000\nv_mov_b32 v{vVal}, s{sS}")
        a("s_waitcnt vmcnt(3)\ns_barrier")
        hooks = {i: [h] for i, h in enumerate(g.dma())}
        hooks[28] = [f"s_waitcnt vmcnt(16)\nbuffer_store_dword v{vVal}, v{vFl}, {WS}, 0 offen sc1"]
        g.compute(ring, kv == 1, hooks)
        g.toggle_read()
        a(f"s_lshl_b32 s{sK}, s{sS}, 18\ns_add_u32 s{sS}, s{sS}, 1")
        for i in range(8): cvt(a, vP + i, g.acc + 2 * i, g.acc + 2 * i + 1)
        for u in range(2): a(f"buffer_store_dwordx4 v[{vP+4*u}:{vP+4*u+3}], v{vSt}, {WS}, s{sK} offen offset:{1024*u} sc1")
        a(f"s_cmp_lt_u32 s{sS}, 64\ns_cbranch_scc1 L_{nm}_loop")
        if kv == 0: a("s_branch L_kv_done")
    a("L_kv_done:")
    a(f"v_mov_b32 v{vVal}, 64\ns_waitcnt vmcnt(0)\nbuffer_store_dword v{vVal}, v{vFl}, {WS}, 0 offen sc1")
    a(f"s_cmp_ge_u32 s{S_J}, 28\ns_cbranch_scc1 L_drain")
    gen_moe(a, o, V, vFy)

def gen_moe(a, o, V, vFy):
    vW = V(); vWd = V(); vTr = V(); vT = V(); vU = V(); vIdx = V(); vL16 = V(); vX = V(16, 4); acc = V(64, 4); vR = V(32, 4)
    PART = LDS_MISC
    a("s_barrier")
    for b, p in enumerate((P_WG, P_WU, P_WD)): srd(a, S_B0 + 4 * b, p, 3584 * 1024 * 2)
    a(f"v_lshrrev_b32 v{vT}, 2, v0\nv_and_b32 v{vU}, 3, v0\nv_lshlrev_b32 v{vU}, 4, v{vU}\nv_mul_u32_u24 v{vW}, 7168, v{vT}\nv_add_u32 v{vW}, v{vW}, v{vU}\nv_lshl_add_u32 v{vWd}, v{vT}, 11, v{vU}")
    a(f"s_mul_i32 s{sRow}, s{S_W}, {256 * 7168}\ns_lshl_b32 s{S_G}, s{sT1}, 7\ns_add_u32 s{sRow}, s{sRow}, s{S_G}")
    a(f"s_lshl_b32 s{sT2}, s{sT1}, 17\ns_lshl_b32 s{S_G}, s{S_W}, 9\ns_add_u32 s{sT2}, s{sT2}, s{S_G}")
    a(f"v_lshrrev_b32 v{vT}, 5, v0\nv_lshlrev_b32 v{vT}, 4, v{vT}\nv_bfe_u32 v{vU}, v0, 3, 1\nv_lshl_add_u32 v{vT}, v{vU}, 3, v{vT}")
    a(f"v_mov_b32 v{vIdx}, 0x4444\nv_mul_u32_u24 v{vU}, 0xaaaa, v{vU}\nv_add_u32 v{vIdx}, v{vIdx}, v{vU}")
    a(f"v_bfe_u32 v{vU}, v0, 4, 1\nv_lshl_add_u32 v{vT}, v{vU}, 2, v{vT}\nv_bfe_u32 v{vU}, v0, 2, 1\nv_add_u32 v{vT}, v{vT}, v{vU}\nv_lshlrev_b32 v{vT}, 6, v{vT}")
    a(f"v_and_b32 v{vU}, 3, v0\nv_lshl_add_u32 v{vT}, v{vU}, 3, v{vT}\ns_lshl_b32 s{S_G}, s{S_W}, 15\nv_add_u32 v{vTr}, s{S_G}, v{vT}")
    a(f"v_lshlrev_b32 v{vL16}, 4, v0\nv_add_u32 v{vL16}, {PART}, v{vL16}")
    def tr(ch):
        return [(ch * 32 + (tt * 2 + tile) * 8 + 2 * p, vTr, (64 * tt + 32 * (p >> 1) + 2 * (p & 1)) * 64 + tile * 32)
                for tt in range(2) for tile in range(2) for p in range(4)]
    src = lambda ch: (S_B0 + 4 * (ch // 4), vW, sRow, [((ch % 2) * 128 + 16 * i) * 7168 + ((ch // 2) % 2) * 64 for i in range(8)])
    srcd = lambda ch: (S_B0 + 8, vWd, sT2, [(16 * (i % 4)) * 2048 + (2 * ch + i // 4) * 64 for i in range(8)])
    load_weights(a, 8, src, tr, tail_issue=lambda slot: dma_chunk(a, slot, srcd(slot), 'add'), op='add')
    wait_all_arrived(a)
    a(f"v_and_b32 v{vT}, 7, v0\nv_lshlrev_b32 v{vT}, 2, v{vT}\nv_add_u32 v{vT}, {FL_Y + 128}, v{vT}")
    poll(a, vT, vU, 0)
    a(f"v_not_b32 v{vU}, v{vU}\nv_and_b32 v{vU}, 0x7ff, v{vU}\nv_lshlrev_b32 v{vU}, 11, v{vU}\nv_lshrrev_b32 v{vT}, 3, v0\nv_lshl_add_u32 v{vU}, v{vT}, 4, v{vU}\ns_lshl_b32 s{S_G}, s{S_W}, 9")
    for t in range(4): a(f"buffer_load_dwordx4 v[{vX+4*t}:{vX+4*t+3}], v{vU}, {SX}, s{S_G} offen offset:{128*t}")
    for i in range(64): a(f"v_mov_b32 v{acc+i}, 0")
    a("s_waitcnt vmcnt(0)")
    for t in range(4):
        for T in range(8):
            w = (T >> 1) * 64 + (t * 2 + (T & 1)) * 8
            a(f"v_smfmac_f32_16x16x64_bf16 v[{acc+4*T}:{acc+4*T+3}], v[{vX+4*t}:{vX+4*t+3}], a[{w}:{w+7}], v{vIdx}")
    a(f"s_lshl_b32 s{S_G}, s{S_W}, 13\nv_add_u32 v{vT}, s{S_G}, v{vL16}")
    for T in range(8): a(f"ds_write_b128 v{vT}, v[{acc+4*T}:{acc+4*T+3}] offset:{1024*T}")
    load_weights(a, 4, None, tr, preissued=True)
    a("s_barrier")
    a(f"s_lshl_b32 s{S_G}, s{S_W}, 10\nv_add_u32 v{vT}, s{S_G}, v{vL16}")
    for ww in range(4):
        for k in range(2): a(f"ds_read_b128 v[{vR+8*ww+4*k}:{vR+8*ww+4*k+3}], v{vT} offset:{8192*ww + 4096*k}")
    a("s_waitcnt lgkmcnt(0)\ns_barrier")
    for i in range(0, 8, 2):
        pk(a, 'add', vR + i, vR + i, vR + 8 + i); pk(a, 'add', vR + 16 + i, vR + 16 + i, vR + 24 + i); pk(a, 'add', vR + i, vR + i, vR + 16 + i)
    for i in range(8): a(f"v_mov_b32 v{vR+8+i}, v{vR+i}")
    for i in range(8): a(f"v_permlane32_swap_b32 v{vR+i}, v{vR+8+i}")
    for i in range(0, 8, 2): pk(a, 'add', vR + i, vR + i, vR + 8 + i)
    for i in range(4): a(f"v_mul_f32 v{vR+8+i}, {hex(f32bits(-LOG2E))}, v{vR+i}")
    for i in range(4): a(f"v_exp_f32 v{vR+8+i}, v{vR+8+i}")
    for i in range(4): a(f"v_add_f32 v{vR+8+i}, 1.0, v{vR+8+i}")
    for i in range(4): a(f"v_rcp_f32 v{vR+8+i}, v{vR+8+i}")
    for i in range(4): a(f"v_mul_f32 v{vR+i}, v{vR+i}, v{vR+8+i}")
    for i in range(4): a(f"v_mul_f32 v{vR+i}, v{vR+i}, v{vR+4+i}")
    for i in range(4): cvt(a, vR + i, vR + i, vR + i)
    a(f"v_bfe_u32 v{vT}, v0, 4, 1\nv_lshlrev_b32 v{vT}, 9, v{vT}\nv_and_b32 v{vU}, 15, v0\nv_lshl_add_u32 v{vT}, v{vU}, 1, v{vT}\ns_lshl_b32 s{S_G}, s{S_W}, 5\ns_add_u32 s{S_G}, s{S_G}, {PART}\nv_add_u32 v{vT}, s{S_G}, v{vT}")
    for i in range(4): a(f"ds_write_b16 v{vT}, v{vR+i} offset:{128*i}")
    a(f"v_and_b32 v{vT}, 7, v0\nv_lshlrev_b32 v{vT}, 7, v{vT}\nv_lshrrev_b32 v{vU}, 3, v0\nv_lshl_add_u32 v{vT}, v{vU}, 4, v{vT}\nv_add_u32 v{vT}, {PART}, v{vT}")
    for i in range(64): a(f"v_mov_b32 v{acc+i}, 0")
    a("s_waitcnt lgkmcnt(0)\ns_barrier")
    a(f"ds_read_b128 v[{vX}:{vX+3}], v{vT}\ns_waitcnt lgkmcnt(0)")
    for T in range(16): a(f"v_smfmac_f32_16x16x64_bf16 v[{acc+4*T}:{acc+4*T+3}], v[{vX}:{vX+3}], a[{8*T}:{8*T+7}], v{vIdx}")
    a(f"v_lshrrev_b32 v{vT}, 5, v0\nv_and_b32 v{vU}, 15, v0\nv_lshl_add_u32 v{vT}, v{vT}, 4, v{vU}\nv_lshlrev_b32 v{vT}, 5, v{vT}\nv_bfe_u32 v{vU}, v0, 4, 1\nv_lshl_add_u32 v{vT}, v{vU}, 4, v{vT}")
    a(f"s_lshl_b32 s{sK}, s{sT1}, 15\ns_lshl_b32 s{S_G}, s{S_W}, 13\ns_add_u32 s{sK}, s{sK}, s{S_G}\ns_add_u32 s{sK}, s{sK}, {WS_YP}")
    for P in range(8):
        b = acc + 8 * P
        for i in range(4): a(f"v_permlane32_swap_b32 v{b+i}, v{b+4+i}")
        for i in (0, 2): pk(a, 'add', b + i, b + i, b + 4 + i)
        if P == 4: a(f"s_add_u32 s{sK}, s{sK}, 4096")
        a(f"buffer_store_dwordx4 v[{b}:{b+3}], v{vT}, {WS}, s{sK} offen offset:{1024*(P%4)} sc1")
    a(f"v_mov_b32 v{vU}, 1\ns_waitcnt vmcnt(0)\ns_barrier")
    a(f"s_cmp_lg_u32 s{S_W}, 0\ns_cbranch_scc1 L_drain")
    a(f"buffer_store_dword v{vU}, v{vFy}, {WS}, 0 offen sc1")
    a("s_branch L_drain")

def gen_q(a, o):
    V = VAlloc(1); g = Gemm(a, V, False)
    vQw = V(); vQr = V(); vL = V(); vKm = V(); vVm = V(); vF1 = V(); vF2 = V(); vFo = V(); vT = V(2, 2); vM = V(2, 2); vC = V(2, 2)
    vQ = V(32, 4); vK = V(32, 4); vV = V(32, 4); vB = V(16, 4); vVmf = V(16, 4); vSm = V(16, 4); vPf = V(12, 4); vO2 = V(16, 4); vP = V(16, 4)
    ring = vK; vSx = g.acc
    QB = LDS_MISC
    a("L_q:")
    a(f"s_lshr_b32 s{S_G}, s{S_J}, 3\ns_lshl_b32 s{S_G}, s{S_G}, 7\ns_and_b32 s{S_G+1}, s{S_J}, 7\ns_lshl_b32 s{S_G+1}, s{S_G+1}, 4\ns_add_u32 s{S_G}, s{S_G}, s{S_G+1}")
    a(f"s_lshl_b32 s{S_G+1}, s{S_W}, 2\ns_add_u32 s{S_G}, s{S_G}, s{S_G+1}\ns_add_u32 s{S_G}, s{S_G}, {FL_O}")
    lane1(a, vFo, S_G, vT)
    a(f"v_mov_b32 v{vT}, 0\nbuffer_store_dword v{vT}, v{vFo}, {WS}, 0 offen sc1")
    a(f"s_lshl_b32 s{S_G}, s{S_J}, 7\ns_add_u32 s{S_G}, s{S_G}, {FL_KV}\nv_and_b32 v{vF1}, 7, v0\nv_lshlrev_b32 v{vF1}, 2, v{vF1}\nv_add_u32 v{vF1}, s{S_G}, v{vF1}")
    a(f"s_add_u32 s{S_G}, s{S_G}, {FL_M - FL_KV}\nv_and_b32 v{vF2}, 3, v0\nv_lshlrev_b32 v{vF2}, 2, v{vF2}\nv_add_u32 v{vF2}, s{S_G}, v{vF2}")
    a(f"v_lshlrev_b32 v{vT}, 4, v0\ns_lshl_b32 s{S_G}, s{S_J}, 13\nv_add_u32 v{vL}, s{S_G}, v{vT}")
    a(f"s_lshl_b32 s{S_G}, s{S_W}, 11\ns_add_u32 s{S_G}, s{S_G}, {QB}\nv_add_u32 v{vQw}, s{S_G}, v{vT}")
    a(f"s_lshl_b32 s{S_G}, s{S_W}, 13\ns_add_u32 s{S_G}, s{S_G}, {QB}\nv_add_u32 v{vQr}, s{S_G}, v{vT}")
    a(f"s_lshl_b32 s{S_G}, s{S_J}, 12\ns_add_u32 s{S_G}, s{S_G}, {WS_KVM}\nv_lshrrev_b32 v{vT}, 5, v0")
    a(f"v_and_b32 v{vKm}, 7, v0\nv_lshlrev_b32 v{vKm}, 4, v{vKm}\nv_lshl_add_u32 v{vKm}, v{vT}, 7, v{vKm}\nv_add_u32 v{vKm}, s{S_G}, v{vKm}")
    a(f"v_and_b32 v{vVm}, 31, v0\nv_lshlrev_b32 v{vVm}, 4, v{vVm}\nv_lshl_add_u32 v{vVm}, v{vT}, 3, v{vVm}\nv_add_u32 v{vVm}, s{S_G}, v{vVm}")
    a(f"v_and_b32 v{vT+1}, 31, v0\nv_lshlrev_b32 v{vT}, 2, v{vT}\nv_sub_u32 v{vT}, v{vT+1}, v{vT}\nv_mov_b32 v{vT+1}, {hex(f32bits(-1e30))}")
    for r in range(16):
        a(f"v_cmp_gt_i32 vcc, {8*(r>>2) + (r&3)}, v{vT}\nv_cndmask_b32 v{vB+r}, 0, v{vT+1}, vcc")
    for c in range(4): a(f"v_mov_b32 v{vVmf+4*c+2}, 0\nv_mov_b32 v{vVmf+4*c+3}, 0")
    a(f"v_mov_b32 v{vPf+10}, 0\nv_mov_b32 v{vPf+11}, 0")
    sc = hex(f32bits(128 ** -0.5 * LOG2E))
    a(f"v_mov_b32 v{vC}, {sc}\nv_mov_b32 v{vC+1}, {sc}")
    srd(a, S_T, P_X, 4 << 20)
    a(f"s_lshl_b32 s{sRow}, s{S_J}, 8\ns_lshl_b32 s{S_G}, s{S_W}, 6\ns_add_u32 s{sRow}, s{sRow}, s{S_G}")
    g.weights(P_WQ, 13, lambda: arrive(a))
    g.addrs()
    a(f"s_mov_b32 s{sS}, 0\ns_mov_b32 s{sSrc}, 0\ns_barrier")
    for h in g.dma(): a(h)
    wait_all_arrived(a)
    a("L_q_loop:")
    a(f"s_xor_b32 s{sM0}, s{sM0}, 0x10000\ns_add_u32 s{sSrc}, s{sSrc}, 0x10000")
    a("s_waitcnt vmcnt(0)\ns_barrier")
    g.compute(ring, False, {i: [h] for i, h in enumerate(g.dma())})
    g.toggle_read()
    a(f"s_and_b32 s{sK}, s{sS}, 3\ns_lshl_b32 s{S_G}, s{sK}, 13\nv_add_u32 v{vT}, s{S_G}, v{vQw}\ns_add_u32 s{sS}, s{sS}, 1")
    for i in range(8): cvt(a, vP + i, g.acc + 2 * i, g.acc + 2 * i + 1)
    for u in range(2): a(f"ds_write_b128 v{vT}, v[{vP+4*u}:{vP+4*u+3}] offset:{1024*u}")
    a("s_waitcnt lgkmcnt(0)")
    a(f"s_cmp_lt_u32 s{sK}, 3\ns_cbranch_scc1 L_q_loop")
    a("s_barrier")
    for k in range(8): a(f"ds_read_b128 v[{vQ+4*k}:{vQ+4*k+3}], v{vQr} offset:{1024*k}")
    a(f"s_add_u32 s{sT0}, s{sS}, s{S_W}\ns_sub_u32 s{sT0}, s{sT0}, 4\ns_lshl_b32 s{sT1}, s{sT0}, 18\ns_add_u32 s{sT2}, s{sT1}, 4096")
    poll(a, vF1, vT, f"s{sT0}")
    for k in range(8): a(f"buffer_load_dwordx4 v[{vK+4*k}:{vK+4*k+3}], v{vL}, {WS}, s{sT1 if k < 4 else sT2} offen offset:{1024*(k%4)} sc1")
    a(f"s_add_u32 s{sT1}, s{sT1}, {WS_VX}\ns_add_u32 s{sT2}, s{sT2}, {WS_VX}")
    for k in range(8): a(f"buffer_load_dwordx4 v[{vV+4*k}:{vV+4*k+3}], v{vL}, {WS}, s{sT1 if k < 4 else sT2} offen offset:{1024*(k%4)} sc1")
    a(f"s_add_u32 s{sT1}, s{sT1}, {WS_O - WS_VX}\ns_add_u32 s{sT2}, s{sT2}, {WS_O - WS_VX}\ns_lshl_b32 s{sK}, s{sT0}, 17")
    a("s_waitcnt lgkmcnt(0)")
    for k in range(8):
        a(f"s_waitcnt vmcnt({15-k})")
        m32(a, vSx, f"v[{vK+4*k}:{vK+4*k+3}]", f"v[{vQ+4*k}:{vQ+4*k+3}]", f"v[{vB}:{vB+15}]" if k == 0 else f"v[{vSx}:{vSx+15}]")
    poll(a, vF2, vT, f"s{sT0}", sleep=1)
    for k in range(8): a(f"buffer_load_dwordx4 v[{vK+4*k}:{vK+4*k+3}], v{vKm}, {WS}, s{sK} offen offset:{1024*(k>>1) + 256*(k&1)} sc1")
    for c in range(4): a(f"buffer_load_dwordx2 v[{vVmf+4*c}:{vVmf+4*c+1}], v{vVm}, {WS}, s{sK} offen offset:{1024*c + 512} sc1")
    a(f"v_max3_f32 v{vM}, v{vSx}, v{vSx+1}, v{vSx+2}")
    for r in range(3, 15, 2): a(f"v_max3_f32 v{vM}, v{vM}, v{vSx+r}, v{vSx+r+1}")
    a(f"v_max_f32 v{vM}, v{vM}, v{vSx+15}")
    for k in range(8):
        a(f"s_waitcnt vmcnt({11-k})")
        m32(a, vSm, f"v[{vK+4*k}:{vK+4*k+3}]", f"v[{vQ+4*k}:{vQ+4*k+3}]", "0" if k == 0 else f"v[{vSm}:{vSm+15}]")
    a(f"v_max3_f32 v{vM}, v{vM}, v{vSm}, v{vSm+1}\nv_max3_f32 v{vM}, v{vM}, v{vSm+2}, v{vSm+3}")
    a(f"v_mov_b32 v{vT}, v{vM}\nv_permlane32_swap_b32 v{vM}, v{vT}\nv_max_f32 v{vM}, v{vM}, v{vT}\nv_mul_f32 v{vM}, v{vM}, v{vC}")
    regs = [vSx + i for i in range(0, 16, 2)] + [vSm, vSm + 2]
    for r in regs: a(f"v_pk_fma_f32 v[{r}:{r+1}], v[{r}:{r+1}], v[{vC}:{vC+1}], v[{vM}:{vM+1}] op_sel_hi:[1,1,0] neg_lo:[0,0,1] neg_hi:[0,0,1]")
    for r in regs: a(f"v_exp_f32 v{r}, v{r}\nv_exp_f32 v{r+1}, v{r+1}")
    for i, r in enumerate(regs): cvt(a, vPf + i, r, r + 1)
    pk(a, 'add', vM, regs[0], regs[1])
    for r in regs[2:]: pk(a, 'add', vM, vM, r)
    a(f"v_add_f32 v{vM}, v{vM}, v{vM+1}\nv_mov_b32 v{vT}, v{vM}\nv_permlane32_swap_b32 v{vM}, v{vT}\nv_add_f32 v{vM}, v{vM}, v{vT}\nv_rcp_f32 v{vM}, v{vM}")
    a("s_waitcnt vmcnt(0)")
    def pv(c):
        d = (vO2, vSm)[c & 1]
        m32(a, d, f"v[{vV+8*c}:{vV+8*c+3}]", f"v[{vPf}:{vPf+3}]", "0")
        m32(a, d, f"v[{vV+8*c+4}:{vV+8*c+7}]", f"v[{vPf+4}:{vPf+7}]", f"v[{d}:{d+15}]")
        m32(a, d, f"v[{vVmf+4*c}:{vVmf+4*c+3}]", f"v[{vPf+8}:{vPf+11}]", f"v[{d}:{d+15}]")
    def fin(c):
        d = (vO2, vSm)[c & 1]; p = vP + 8 * (c & 1)
        for i in range(0, 16, 2): pk(a, 'mul', d + i, d + i, vM, "op_sel_hi:[1,0]")
        for i in range(8): cvt(a, p + i, d + 2 * i, d + 2 * i + 1)
        for u in range(2):
            k = 2 * c + u
            a(f"buffer_store_dwordx4 v[{p+4*u}:{p+4*u+3}], v{vL}, {WS}, s{sT1 if k < 4 else sT2} offen offset:{1024*(k%4)} sc1")
    pv(0); pv(1); fin(0); pv(2); fin(1); pv(3); fin(2); fin(3)
    a(f"s_lshr_b32 s{S_G}, s{sS}, 2\nv_mov_b32 v{vT}, s{S_G}\ns_waitcnt vmcnt(0)\nbuffer_store_dword v{vT}, v{vFo}, {WS}, 0 offen sc1")
    a(f"s_cmp_lt_u32 s{sS}, 64\ns_cbranch_scc1 L_q_loop")
    a("s_branch L_drain")

def gen_o(a, o):
    V = VAlloc(1); g = Gemm(a, V, True)
    vT = V(2, 2); vU = V(2, 2); vFo = V(); vFv = V(); vPs = V(); vPl = [V(), V(), V()]; vXo = V(); vGo = V(); vTok = V(); vSv = V(); vY = V()
    vX = V(2, 2); vG = V(2, 2); vR = V(12, 4); ring = V(4 * D, 4); big = V(128, 4)
    SO = f"s[{S_B0+4}:{S_B0+7}]"; SAVE = LDS_MISC
    sKq, sPend, sTag, sSl, sCol = sKey + 8, sKey + 9, sKey + 10, sKey + 11, sKey + 12
    a("L_o:")
    a(f"s_lshr_b32 s{sKq}, s{S_J}, 3\ns_and_b32 s{sT0}, s{S_J}, 7")
    a(f"s_lshl_b32 s{S_G}, s{sT0}, 16\ns_lshl_b32 s{S_G+1}, s{S_W}, 14\ns_add_u32 s{S_G}, s{S_G}, s{S_G+1}\ns_lshl_b32 s{S_G+1}, s{sKq}, 12\ns_add_u32 s{S_G}, s{S_G}, s{S_G+1}\ns_add_u32 s{S_G}, s{S_G}, {WS_RP}")
    a(f"v_lshlrev_b32 v{vPs}, 4, v0\nv_add_u32 v{vPs}, s{S_G}, v{vPs}")
    for r in range(1, 4): a(f"v_xor_b32 v{vPl[r-1]}, {4096*r}, v{vPs}")
    for i in range(4): a(f"v_mov_b32 v{vR+i}, -1")
    a(f"s_mov_b32 s{S_G}, 0x80000")
    for r in range(1, 4):
        a(f"buffer_store_dwordx4 v[{vR}:{vR+3}], v{vPs}, {WS}, 0 offen offset:{1024*r}\nbuffer_store_dwordx4 v[{vR}:{vR+3}], v{vPs}, {WS}, s{S_G} offen offset:{1024*r}")
    a(f"s_lshl_b32 s{S_G}, s{S_J}, 2\ns_add_u32 s{S_G}, s{S_G}, {FL_Y}")
    lane1(a, vFv, S_G, vT)
    a(f"v_mov_b32 v{vU}, 0\nbuffer_store_dword v{vU}, v{vFv}, {WS}, 0 offen sc1")
    a(f"v_and_b32 v{vY}, 7, v0\nv_lshlrev_b32 v{vY}, 2, v{vY}\nv_add_u32 v{vY}, {FL_Y + 128}, v{vY}")
    l = a.label('kz')
    a(f"s_cmp_lg_u32 s{S_J}, 0\ns_cbranch_scc1 {l}\nbuffer_store_dword v{vU}, v{vY}, {WS}, 0 offen sc1\n{l}:")
    a("s_waitcnt vmcnt(0)")
    arrive(a)
    srd(a, S_T, P_X, 4 << 20); srd(a, S_B0 + 4, P_WR, 2048); srd(a, S_B0 + 8, P_GW, 2048)
    a(f"v_and_b32 v{vT}, 15, v0\nv_lshrrev_b32 v{vU}, 4, v0\nv_lshlrev_b32 v{vU}, 4, v{vU}\nv_lshl_add_u32 v{vT}, v{vT}, 11, v{vU}")
    a(f"s_lshl_b32 s{sK}, s{S_J}, 17\ns_lshl_b32 s{S_G}, s{S_W}, 15\ns_add_u32 s{sK}, s{sK}, s{S_G}")
    a(f"s_mov_b32 s{sT1}, 0xaaaaaaaa\ns_mov_b32 s{sT2}, 0xaaaaaaaa")
    assert sT1 % 2 == 0
    for half in range(2):
        for t in range(16): a(f"buffer_load_dwordx4 v[{big+4*t}:{big+4*t+3}], v{vT}, {SX}, s{sK} offen offset:{1024*half + 64*t}")
        a(f"s_not_b64 exec, s[{sT1}:{sT2}]")
        for t in range(16): a(f"buffer_load_dwordx4 v[{big+64+4*t}:{big+67+4*t}], v{vU}, s[{S_B0+4}:{S_B0+7}], 0 offen offset:{1024*half + 64*t}")
        a(f"s_mov_b64 exec, s[{sT1}:{sT2}]")
        for t in range(16): a(f"buffer_load_dwordx4 v[{big+64+4*t}:{big+67+4*t}], v{vU}, s[{S_B0+8}:{S_B0+11}], 0 offen offset:{1024*half + 64*t}")
        a("s_mov_b64 exec, -1\ns_waitcnt vmcnt(0)")
        for t in range(16):
            a(f"v_mfma_f32_16x16x32_bf16 v[{vR}:{vR+3}], v[{big+4*t}:{big+4*t+3}], v[{big+64+4*t}:{big+67+4*t}], " + ("0" if half == 0 and t == 0 else f"v[{vR}:{vR+3}]"))
        a("s_nop 7")
    a(f"v_and_b32 v{vT}, 15, v0\nv_lshl_add_u32 v{vU}, v{vT}, 13, v{vU}\nv_cmp_gt_u32 vcc, 2, v{vT}\nv_mov_b32 v{vT}, {OOB}\nv_cndmask_b32 v{vU}, v{vT}, v{vU}, vcc")
    a(f"s_lshr_b32 s{sK}, s{sK}, 9\ns_add_u32 s{sK}, s{sK}, {WS_RG}")
    a(f"buffer_store_dwordx4 v[{vR}:{vR+3}], v{vU}, {WS}, s{sK} offen sc1\nv_mov_b32 v{vT}, 1\ns_waitcnt vmcnt(0)\ns_barrier")
    l = a.label('rf')
    a(f"s_cmp_lg_u32 s{S_W}, 0\ns_cbranch_scc1 {l}\nbuffer_store_dword v{vT}, v{vFv}, {WS}, 0 offen sc1\n{l}:")
    a(f"s_lshl_b32 s{sCol}, s{sT0}, 8\ns_lshl_b32 s{S_G}, s{S_W}, 6\ns_add_u32 s{sCol}, s{sCol}, s{S_G}\ns_lshl_b32 s{sRow}, s{sKq}, 21\ns_add_u32 s{sRow}, s{sRow}, s{sCol}")
    a(f"s_lshl_b32 s{sT1}, s{sKq}, 4\ns_add_u32 s{sCol}, s{sCol}, s{sT1}")
    g.weights(P_WO, 11, None, trxor=sT1)
    g.addrs()
    wait_all_arrived(a)
    l = a.label('t8')
    a(f"s_or_b32 s{S_G}, s{S_J}, s{S_W}\ns_cbranch_scc1 {l}")
    a(f"v_and_b32 v{vT}, 31, v0\nv_lshlrev_b32 v{vT}, 2, v{vT}\nv_add_u32 v{vT}, {FL_Y}, v{vT}")
    poll(a, vT, vU, 0)
    a(f"v_lshlrev_b32 v{vT}, 4, v0\ns_mov_b32 s{sK}, {WS_RG}\ns_mov_b32 s{sT1}, {WS_RG + 4096}")
    for k in range(8): a(f"buffer_load_dwordx4 v[{big+4*k}:{big+4*k+3}], v{vT}, {WS}, s{sK if k < 4 else sT1} offen offset:{1024*(k%4)} sc1")
    a(f"v_lshlrev_b32 v{vT}, 2, v0\nv_sub_u32 v{vT}, 0xfff, v{vT}\ns_waitcnt vmcnt(0)")
    for i in range(32):
        r = big + i
        a(f"v_cvt_pk_bf16_f32 v{r}, 0, v{r}\nv_ashrrev_i32 v{vU}, 31, v{r}\nv_or_b32 v{vU}, 0x80000000, v{vU}\nv_xor_b32 v{r}, v{r}, v{vU}\nv_and_b32 v{r}, 0xffff0000, v{r}")
        a(f"v_subrev_u32 v{vU}, {256*(i>>2) + (i&3)}, v{vT}\nv_or_b32 v{r}, v{r}, v{vU}")
    a(f"s_mov_b32 s{sK}, 0\ns_mov_b32 s{sT1}, 0\nv_mov_b32 v{vX}, 0")
    lt = a.label('tk')
    a(f"{lt}:")
    a(f"v_max3_u32 v{vU}, v{big}, v{big+1}, v{big+2}")
    for i in range(3, 31, 2): a(f"v_max3_u32 v{vU}, v{vU}, v{big+i}, v{big+i+1}")
    a(f"v_max_u32 v{vU}, v{vU}, v{big+31}")
    for sh in (1, 2, 4, 8): a(f"v_max_u32_dpp v{vU}, v{vU}, v{vU} row_ror:{sh} row_mask:0xf bank_mask:0xf")
    for op in ("16", "32"): a(f"v_mov_b32 v{vT}, v{vU}\nv_permlane{op}_swap_b32 v{vU}, v{vT}\nv_max_u32 v{vU}, v{vU}, v{vT}")
    a(f"v_readfirstlane_b32 s{sT2}, v{vU}")
    for i in range(32): a(f"v_sub_u32 v{big+i}, v{big+i}, v{vU}")
    a(f"s_add_u32 s{sT1}, s{sT1}, s{sT2}\ns_mov_b32 m0, s{sK}\nv_writelane_b32 v{vX}, s{sT1}, m0")
    a(f"s_add_u32 s{sK}, s{sK}, 1\ns_cmp_lt_u32 s{sK}, 8\ns_cbranch_scc1 {lt}")
    a(f"s_mov_b64 exec, 0xff\nbuffer_store_dword v{vX}, v{vY}, {WS}, 0 offen sc1\ns_mov_b64 exec, -1")
    a(f"{l}:")
    poll(a, vY, vSv, 0)
    a(f"v_not_b32 v{vT}, v{vSv}\nv_and_b32 v{vT}, 0x7ff, v{vT}")
    for k in range(8): a(f"v_readlane_b32 s{sKey+k}, v{vT}, {k}")
    srd(a, S_B0 + 4, P_OUT, 4 << 20)
    a(f"v_and_b32 v{vTok}, 31, v0\nv_lshrrev_b32 v{vT}, 5, v0\nv_lshlrev_b32 v{vXo}, 11, v{vTok}\nv_lshl_add_u32 v{vXo}, v{vT}, 3, v{vXo}\nv_add_u32 v{vXo}, s{sCol}, v{vXo}")
    a(f"v_lshlrev_b32 v{vGo}, 2, v{vTok}\nv_add_u32 v{vGo}, {WS_RG + 8192}, v{vGo}")
    a(f"s_lshl_b32 s{S_G}, s{sKq}, 7\ns_add_u32 s{S_G}, s{S_G}, {FL_O}\nv_lshlrev_b32 v{vFo}, 2, v{vTok}\nv_add_u32 v{vFo}, s{S_G}, v{vFo}")
    a(f"s_lshl_b32 s{sSrc}, s{sKq}, 16\ns_add_u32 s{sSrc}, s{sSrc}, {WS_O}\ns_mov_b32 s{sS}, 0\ns_barrier")
    def avail(sSeg, vD):
        a(f"v_lshlrev_b32 v{vT}, 2, v{vD}\nv_and_or_b32 v{vT}, v0, 3, v{vT}\nv_subrev_u32 v{vT}, s{sSeg}, v{vT}\nv_and_b32 v{vU}, 3, v{vT}")
        a(f"v_cmp_gt_i32 vcc, 4, v{vT}\nv_cmp_eq_u32 s[{sT1}:{sT2}], 0, v{vU}\ns_and_b64 vcc, vcc, s[{sT1}:{sT2}]")
    a("L_o_fetch:")
    a(f"buffer_load_dword v{vFv}, v{vFo}, {WS}, 0 offen sc1\ns_waitcnt vmcnt(0)")
    avail(sS, vFv)
    l = a.label('of')
    a(f"s_cbranch_scc0 {l}\ns_sleep 1\ns_sub_u32 s{S_BUD}, s{S_BUD}, 1\ns_cbranch_scc0 L_o_fetch\ns_branch L_abort\n{l}:")
    for h in g.dma(): a(h)
    a("L_o_loop:")
    a(f"buffer_load_dword v{vFv}, v{vFo}, {WS}, 0 offen sc1")
    a(f"s_xor_b32 s{sM0}, s{sM0}, 0x10000\ns_add_u32 s{sSrc}, s{sSrc}, 0x40000\ns_add_u32 s{sT0}, s{sS}, 1")
    a("s_waitcnt vmcnt(0)\ns_barrier")
    avail(sT0, vFv)
    a(f"s_cselect_b32 s{sPend}, 1, 0")
    l = a.label('nd')
    a(f"s_cbranch_scc1 {l}")
    for h in g.dma(): a(h)
    a(f"{l}:")
    a(f"s_lshl_b32 s{sK}, s{sS}, 16\ns_lshl_b32 s{S_G}, s{sS}, 7")
    a(f"buffer_load_dwordx2 v[{vX}:{vX+1}], v{vXo}, {SX}, s{sK} offen\nbuffer_load_dword v{vG}, v{vGo}, {WS}, s{S_G} offen sc1")
    a(f"s_and_b32 s{sSl}, s{sS}, 1\ns_lshl_b32 s{sSl}, s{sSl}, 19\ns_bfe_u32 s{sTag}, s{sS}, 0x10001")
    g.compute(ring, False, {})
    g.toggle_read()
    acc = g.acc
    a("s_waitcnt vmcnt(0)")
    a(f"v_mul_f32 v{vG}, {hex(f32bits(-LOG2E))}, v{vG}\nv_exp_f32 v{vG}, v{vG}")
    for r in range(1, 4):
        a(f"v_and_or_b32 v{acc+4*r}, v{acc+4*r}, -2, s{sTag}")
        a(f"buffer_store_dwordx4 v[{acc+4*r}:{acc+4*r+3}], v{vPs}, {WS}, s{sSl} offen offset:{1024*r}")
    a(f"v_add_f32 v{vG}, 1.0, v{vG}\nv_rcp_f32 v{vG}, v{vG}")
    xs = ring
    a(f"v_lshlrev_b32 v{xs}, 16, v{vX}\nv_and_b32 v{xs+1}, 0xffff0000, v{vX}\nv_lshlrev_b32 v{xs+2}, 16, v{vX+1}\nv_and_b32 v{xs+3}, 0xffff0000, v{vX+1}")
    lp = a.label('op')
    a(f"{lp}:")
    for r in range(1, 4): a(f"buffer_load_dwordx4 v[{vR+4*r-4}:{vR+4*r-1}], v{vPl[r-1]}, {WS}, s{sSl} offen offset:{1024*r} sc1")
    a(f"s_sub_u32 s{S_BUD}, s{S_BUD}, 1\ns_cbranch_scc1 L_abort\ns_waitcnt vmcnt(0)")
    a(f"v_bitop3_b32 v{vT}, v{vR}, v{vR+4}, v{acc+4} bitop3:0x7e\nv_bitop3_b32 v{vT}, v{vT}, v{vR+8}, v{acc+4} bitop3:0xf6\nv_and_b32 v{vT}, 1, v{vT}\nv_cmp_ne_u32 vcc, 0, v{vT}")
    a(f"s_cbranch_vccnz {lp}")
    for i in (0, 2):
        pk(a, 'add', acc + i, acc + i, vR + i); pk(a, 'add', vR + 4 + i, vR + 4 + i, vR + 8 + i); pk(a, 'add', acc + i, acc + i, vR + 4 + i)
    for i in (0, 2):
        pk(a, 'add', vR + i, acc + i, xs + i, "neg_lo:[0,1] neg_hi:[0,1]")
        a(f"v_pk_fma_f32 v[{vR+i}:{vR+i+1}], v[{vR+i}:{vR+i+1}], v[{vG}:{vG+1}], v[{xs+i}:{xs+i+1}] op_sel_hi:[1,0,1]")
    cvt(a, vX, vR, vR + 1); cvt(a, vX + 1, vR + 2, vR + 3)
    a(f"buffer_store_dwordx2 v[{vX}:{vX+1}], v{vXo}, {SO}, s{sK} offen")
    a(f"s_lshl_b32 s{S_G}, s{sS}, 5\nv_add_u32 v{vT}, s{S_G}, v{vTok}\nv_lshrrev_b32 v{vU}, 5, v0\nv_lshlrev_b32 v{vU}, 4, v{vU}\ns_lshl_b32 s{S_G}, s{S_W}, 9\ns_add_u32 s{S_G}, s{S_G}, {SAVE}\nv_add_u32 v{vU}, s{S_G}, v{vU}")
    for k in range(8):
        l = a.label('sv')
        a(f"s_lshr_b32 s{S_G}, s{sKey+k}, 5\ns_cmp_lg_u32 s{S_G}, s{sS}\ns_cbranch_scc1 {l}")
        a(f"v_cmp_eq_u32 vcc, s{sKey+k}, v{vT}\ns_mov_b64 exec, vcc\nds_write_b128 v{vU}, v[{vR}:{vR+3}] offset:{64*k}\nds_write_b32 v{vU}, v{vG} offset:{64*k+32}\ns_mov_b64 exec, -1\ns_waitcnt lgkmcnt(0)")
        a(f"{l}:")
    l = a.label('ys')
    a(f"s_cmp_lg_u32 s{sS}, {o.get('yseg', 58)}\ns_cbranch_scc1 {l}")
    a(f"v_min_u32 v{vT}, 55, v0\nv_lshlrev_b32 v{vT}, 2, v{vT}\nv_add_u32 v{vT}, {FL_Y + 256}, v{vT}")
    poll(a, vT, vU, 0)
    a(f"s_lshl_b32 s{S_G}, s{sCol}, 4\ns_add_u32 s{S_G}, s{S_G}, {WS_YP}\nv_lshlrev_b32 v{vT}, 2, v0")
    for m in range(56):
        a(f"buffer_load_dword v{big+m}, v{vT}, {WS}, s{S_G} offen sc1\ns_add_u32 s{S_G}, s{S_G}, 0x8000")
    a("s_waitcnt vmcnt(0)")
    for m in range(2, 56, 2): pk(a, 'add', big, big, big + m)
    a(f"v_add_f32 v{vY}, v{big}, v{big+1}")
    a(f"v_not_b32 v{vT}, v{vSv}\nv_ashrrev_i32 v{vT}, 31, v{vT}\nv_or_b32 v{vT}, 0x80000000, v{vT}\nv_xor_b32 v{vT}, v{vT}, v{vSv}\nv_and_b32 v{vT}, 0xffff0000, v{vT}")
    a(f"v_mul_f32 v{vT}, {hex(f32bits(-LOG2E))}, v{vT}\nv_exp_f32 v{vT}, v{vT}\nv_add_f32 v{vT}, 1.0, v{vT}\nv_rcp_f32 v{vT}, v{vT}\nv_mul_f32 v{vY}, v{vY}, v{vT}")
    a(f"{l}:")
    a(f"s_add_u32 s{sS}, s{sS}, 1\ns_cmp_eq_u32 s{sS}, 64\ns_cbranch_scc1 L_o_fin")
    a(f"s_cmp_eq_u32 s{sPend}, 0\ns_cbranch_scc1 L_o_loop\ns_branch L_o_fetch")
    a("L_o_fin:")
    a(f"v_and_b32 v{vT}, 7, v0\nv_lshlrev_b32 v{vT}, 6, v{vT}\ns_lshl_b32 s{S_G}, s{S_W}, 9\ns_add_u32 s{S_G}, s{S_G}, {SAVE}\nv_add_u32 v{vT}, s{S_G}, v{vT}\nv_lshrrev_b32 v{vU}, 3, v0")
    a(f"ds_read_b32 v{vG}, v{vT} offset:32\nv_lshl_add_u32 v{vT}, v{vU}, 2, v{vT}\nds_read_b32 v{vX}, v{vT}")
    a(f"v_not_b32 v{vT}, v{vSv}\nv_and_b32 v{vT}, 0x7ff, v{vT}\nv_lshlrev_b32 v{vT}, 11, v{vT}\nv_lshl_add_u32 v{vT}, v{vU}, 1, v{vT}")
    a(f"s_waitcnt lgkmcnt(0)\nv_sub_f32 v{vG}, 1.0, v{vG}\nv_fma_f32 v{vX}, v{vG}, v{vY}, v{vX}")
    cvt(a, vX, vX, vX)
    a(f"s_waitcnt vmcnt(0)\nbuffer_store_short v{vX}, v{vT}, {SO}, s{sCol} offen")
    a("s_branch L_drain")
```

```python
import sys
from common import *
from rec import gen_rec
from xside import gen_kv, gen_q, gen_o

HEADER = open('ref_header.txt').read().split('; Override launch')[0]

def gen(o):
    a = Asm()
    a(f"s_cmp_ge_u32 s2, 256\ns_cbranch_scc1 L_exit")
    a("s_load_dwordx16 s[16:31], s[0:1], 0\ns_load_dwordx16 s[32:47], s[0:1], 64")
    a(f"s_getreg_b32 s{S_X}, hwreg(HW_REG_XCC_ID, 0, 4)")
    a(f"v_lshrrev_b32 v1, 6, v0\nv_and_b32 v0, 63, v0\nv_readfirstlane_b32 s{S_W}, v1")
    a(f"s_mov_b32 s{S_BUD}, {o.get('budget', 1 << 17)}\ns_mov_b32 s{S_PAR}, 1")
    a(f"s_and_b32 s{S_X}, s{S_X}, 7")
    a("s_waitcnt lgkmcnt(0)")
    srd(a, S_WS, P_WSP, WS_SIZE)
    l = a.label('tk')
    a(f"v_mov_b32 v3, {LDS_BYTES - 16}")
    a(f"s_cmp_lg_u32 s{S_W}, 0\ns_cbranch_scc1 {l}")
    a(f"s_lshl_b32 s{S_G}, s{S_X}, 2\nv_mov_b32 v1, s{S_G}\nv_mov_b32 v2, 1\ns_mov_b64 exec, 1")
    a(f"global_atomic_add v2, v1, v2, s[{P_DBG}:{P_DBG+1}] sc0\ns_waitcnt vmcnt(0)\nds_write_b32 v3, v2\ns_mov_b64 exec, -1\ns_waitcnt lgkmcnt(0)")
    a(f"{l}:")
    a(f"s_barrier\nds_read_b32 v2, v3\ns_waitcnt lgkmcnt(0)\nv_readfirstlane_b32 s{S_J}, v2")
    a(f"s_cmp_ge_u32 s{S_J}, 32\ns_cbranch_scc1 L_abort")
    if o.get('par', 0):
        l = a.label('par')
        a(f"s_cmp_lg_u32 s2, 0\ns_cbranch_scc1 {l}\ns_mov_b32 s{S_PAR}, 0x2001\n{l}:")
    a(f"s_cmp_lt_u32 s{S_X}, 4\ns_cbranch_scc1 L_rec")
    roles = o.get('roles', 15)
    if roles & 2: a(f"s_cmp_lt_u32 s{S_X}, 6\ns_cbranch_scc1 L_kv")
    if roles & 4: a(f"s_cmp_eq_u32 s{S_X}, 6\ns_cbranch_scc1 L_q")
    if roles & 8: a(f"s_cmp_eq_u32 s{S_X}, 7\ns_cbranch_scc1 L_o")
    if not roles & 1: a("L_rec:")
    arrive(a)
    a("s_branch L_drain")
    if roles & 2: gen_kv(a, o)
    if roles & 4: gen_q(a, o)
    if roles & 8: gen_o(a, o)
    if roles & 1: gen_rec(a, o)
    a("L_abort:")
    a(f"v_mov_b32 v1, 132\nv_mov_b32 v2, 1\ns_mov_b64 exec, 1\nglobal_atomic_add v1, v2, s[{P_DBG}:{P_DBG+1}]")
    a("L_drain:")
    a("s_waitcnt vmcnt(0) lgkmcnt(0)")
    a("L_exit:")
    a("s_endpgm")
    bad = a.check_branches()
    for b in bad: print("BRANCH HAZARD:", b, file=sys.stderr)
    txt = HEADER + f"; @launch grid=(256,1,1) block=(256,1,1) lds={LDS_BYTES}\n"
    txt += f""".amdgcn_target "amdgcn-amd-amdhsa--gfx950"
.text
.globl {KNAME}
.p2align 8
.type {KNAME},@function
{KNAME}:
""" + a.text() + f""".section .rodata,"a"
.p2align 6
.amdhsa_kernel {KNAME}
  .amdhsa_next_free_vgpr 512
  .amdhsa_next_free_sgpr 102
  .amdhsa_accum_offset 256
  .amdhsa_group_segment_fixed_size 0
  .amdhsa_kernarg_size 128
  .amdhsa_user_sgpr_count 2
  .amdhsa_user_sgpr_kernarg_segment_ptr 1
  .amdhsa_system_sgpr_workgroup_id_x 1
  .amdhsa_float_denorm_mode_32 3
.end_amdhsa_kernel
"""
    return txt

if __name__ == '__main__':
    o = {}
    for kv in sys.argv[2:]:
        k, v = kv.split('='); o[k] = int(v, 0)
    open(sys.argv[1], 'w').write(gen(o))
```

```python
from asmlib import *

KNAME = "gated_mix__memory_aug_recurrent_mem_tr__moe_arch_mod__prompt_kernel"

WS_KX  = 0x0000000
WS_VX  = 0x1000000
WS_O   = 0x2000000
WS_KVM = 0x3000000
WS_RC  = 0x4000000
WS_FC  = 0x4080000
WS_RA  = 0x4280000
WS_RS  = 0x4300000
WS_FL  = 0x4200000
FL_KV  = WS_FL
FL_M   = WS_FL + 0x1000
FL_O   = WS_FL + 0x2000
FL_Y   = WS_FL + 0x3000
FL_EO  = WS_FL + 0x4000
FL_ES  = WS_FL + 0x8000
WS_RP  = 0x4400000
WS_RG  = 0x4800000
WS_YP  = 0x4900000
WS_YS  = 0x4880000
WS_DBG = 0x6000000
WS_SIZE = 0x10000000
OOB = 0x80000000

S_WS = 4
S_T  = 8
S_X, S_J, S_W, S_BUD = 12, 13, 14, 15
P_X, P_MEM0, P_WQ, P_WK, P_WV, P_WO = 16, 18, 20, 22, 24, 26
P_WR, P_WG, P_WU, P_WD, P_GW, P_OUT, P_DBG, P_WSP = 32, 34, 36, 38, 40, 42, 44, 46
S_B0 = 48
S_G = 64
S_PAR = 100

LDS_BYTES = 160 * 1024
LDS_MISC = 128 * 1024

def srd(a, d, p, nbytes):
    a(f"s_mov_b32 s{d}, s{p}\ns_and_b32 s{d+1}, s{p+1}, 0xffff\ns_mov_b32 s{d+2}, {nbytes}\ns_mov_b32 s{d+3}, 0x20000")

class VAlloc:
    def __init__(self, start): self.n = start
    def __call__(self, k=1, align=None):
        al = align or (2 if k > 1 else 1)
        self.n = (self.n + al - 1) // al * al
        r = self.n; self.n += k
        assert self.n <= 250, "out of VGPRs"
        return r

def load_weights(a, nch, src, trfun, after_first=None, preissued=False, tail_issue=None, op='xor'):
    if not preissued:
        for ch in range(min(4, nch)): dma_chunk(a, ch % 4, src(ch), op)
    extra = 0
    for ch in range(nch):
        a(f"s_waitcnt vmcnt({min(24, (nch - 1 - ch) * 8 + extra)})")
        if ch == 0 and after_first: after_first()
        for (areg, vaddr, off) in trfun(ch):
            a(f"ds_read_b64_tr_b16 a[{areg}:{areg+1}], v{vaddr} offset:{(ch % 4) * 8192 + off}")
        a("s_waitcnt lgkmcnt(0)")
        if ch + 4 < nch: dma_chunk(a, ch % 4, src(ch + 4), op)
        elif tail_issue:
            tail_issue(ch % 4); extra += 8

WFL = dict(f='')
def dma_chunk(a, slot, sr_, op):
    sM, sO = S_G, S_G + 1
    srdn, voff, soff, offs = sr_
    a(f"s_lshl_b32 s{sM}, s{S_W}, 15")
    a(f"s_add_u32 m0, s{sM}, {slot * 8192}")
    for i in range(8):
        a(f"s_{'xor_b32' if op == 'xor' else 'add_u32'} s{sO}, s{soff}, {offs[i]}")
        a(f"buffer_load_dwordx4 v{voff}, s[{srdn}:{srdn+3}], s{sO} offen {WFL['f']} lds")
        if i < 7: a("s_add_u32 m0, m0, 1024")

def arrive(a):
    l = a.label('arr')
    a("s_barrier")
    a(f"s_cmp_lg_u32 s{S_W}, 0\ns_cbranch_scc1 {l}")
    a(f"v_mov_b32 v250, 128\nv_mov_b32 v251, s{S_PAR}\ns_mov_b64 exec, 1")
    a(f"global_atomic_add v250, v251, s[{P_DBG}:{P_DBG+1}]")
    a("s_mov_b64 exec, -1")
    a(f"{l}:")

def wait_all_arrived(a):
    l = a.label('wall'); d = a.label('walld')
    a("v_mov_b32 v250, 128")
    a(f"{l}:")
    a(f"global_load_dword v251, v250, s[{P_DBG}:{P_DBG+1}] sc1\ns_waitcnt vmcnt(0)")
    a(f"v_readfirstlane_b32 s{S_PAR}, v251")
    a(f"s_and_b32 s{S_G}, s{S_PAR}, 0x1ff\ns_cmp_eq_u32 s{S_G}, 256\ns_cbranch_scc1 {d}")
    a(f"s_sleep 4\ns_sub_u32 s{S_BUD}, s{S_BUD}, 1\ns_cbranch_scc0 {l}\ns_branch L_abort")
    a(f"{d}:")
    a(f"s_and_b32 s{S_PAR}, s{S_PAR}, 0x2000")

import struct
def f32bits(x): return struct.unpack('<I', struct.pack('<f', x))[0]

TL = dict(on=False)
def tl(a, idx, sidx=None, clk=False):
    if not TL['on']: return
    a("s_memtime s[96:97]" if clk else "s_memrealtime s[96:97]")
    a(f"s_lshl_b32 s98, s{S_X}, 5\ns_add_u32 s98, s98, s{S_J}\ns_lshl_b32 s98, s98, 2\ns_add_u32 s98, s98, s{S_W}\ns_lshl_b32 s98, s98, 8")
    if sidx is not None: a(f"s_add_u32 s98, s98, s{sidx}")
    a(f"s_add_u32 s98, s98, {idx}\ns_lshl_b32 s98, s98, 2\ns_add_u32 s98, s98, {WS_DBG + 0x400000}")
    a(f"s_waitcnt lgkmcnt(0)\nv_mov_b32 v252, s96\nv_mov_b32 v253, s98\ns_mov_b64 exec, 1\nbuffer_store_dword v252, v253, s[{S_WS}:{S_WS+3}], 0 offen\ns_mov_b64 exec, -1")
```

```python
from common import *
import math

def gen_rec(a, o):
    stamps = o.get('stamps', False)
    GAP = o.get('gap', 8)
    ES = o.get('es', 2); EO = o.get('eo', 0)
    assert not (ES == 2 and EO)
    V = VAlloc(1)
    vIdx = V(); vLdA = V(); vL16 = V(); vT0 = V(); vT1 = V(); vT2 = V(); vT3 = V()
    vA = V(16, 4)
    aQ = [V(4, 4), V(4, 4)]; aK = [V(4, 4), V(4, 4)]; aV = [V(4, 4), V(4, 4)]; aW = [V(4, 4), V(4, 4)]
    vP = [V(4, 4), V(4, 4)]
    vSel = V(4, 4); vSelV = V(4, 4); vOnes = V(4, 4); vSelW = V(4, 4)
    vOut = V(4, 4); vPoison = V(4, 4)
    vF2 = [V(4, 4), V(4, 4)]
    vStA = V(); vStO = V(); vStX = V(); vStM = V(); vLdX = V(); vLdM = V()
    vLdC = [V(), V(), V()]; vStC = V()
    vLdK = [V()]; vLdV = [V()]; vFl = V(); vFlA = V()
    vVpW = V(); vVmW = V(); vKvmR = V(); vStKVM = V(); vFlM = V(); vPzA = V(); vPzS = V()
    vStamp = V(); vStampA = V()
    LAY = o.get('lay', 1)
    vLdAx = [vLdA, V(), V(), V()]
    vWq = V(); vWo = V(); vTrQ = V(); vTrV = V()
    vMx = V(2, 2)
    vEoS = V(); vEoL = V(); vEsS = V(); vEsL = V(); vStep = V(); vEp = V(4, 4)
    base = V(0, 4)
    vR = V(24, 4); vF = V(4, 4); vTm = V(4, 4); vTx = [V(4, 4), V(4, 4)]; vKx = [V(4, 4), V(4, 4)]
    vVx = vKx
    vSX = V(16, 4); vSM = V(4, 4)
    vVr = [V(4, 4), V(4, 4)]; vVm = [V(4, 4), V(4, 4)]
    vPf = V(4, 4); vPm = V(4, 4); vL = V(4, 4); vO = vF2
    NS = o.get('csets', 3)
    vC = base + 12
    assert vC + 12 * NS <= 250
    sS, sSlA, sSlAn, sSlO, sSlS, sSlC, sTag, sKV, sSeg, sPz, sScale = range(S_G + 4, S_G + 15)
    sRow, sRowO = S_G + 15, S_G + 16
    sH, sC = S_G + 17, S_G + 18
    sPzS = S_G + 19
    sRot = 101
    sFc = 28
    sOne, sCnt, sTgt = S_B0, S_B0 + 1, S_B0 + 2
    EC = o.get('ec', 0); EA = o.get('ea', 0)
    sStamp = S_G + 20
    QKP = LDS_MISC; VP = QKP + 8192; WP = VP + 4096; KVM = WP + 4096
    WS = f"s[{S_WS}:{S_WS+3}]"

    a("L_rec:")
    a(f"s_lshr_b32 s{sH}, s{S_J}, 2\ns_lshl_b32 s{S_G}, s{S_X}, 3\ns_add_u32 s{sH}, s{sH}, s{S_G}\ns_and_b32 s{sC}, s{S_J}, 3")
    ROT = o.get('rot', 15)
    a(f"s_and_b32 s{sRot}, s{S_J}, {ROT}\ns_lshl_b32 s{S_G}, s{S_W}, 2\ns_xor_b32 s{sRot}, s{sRot}, s{S_G}")
    a(f"v_and_b32 v{vT0}, 7, v0\nv_bfe_u32 v{vT1}, v0, 3, 1\nv_lshrrev_b32 v{vT2}, 4, v0\nv_lshlrev_b32 v{vL16}, 4, v0")
    a(f"v_mov_b32 v{vPoison}, -1\nv_mov_b32 v{vPoison+1}, -1\nv_mov_b32 v{vPoison+2}, -1\nv_mov_b32 v{vPoison+3}, -1")
    a(f"s_lshl_b32 s{S_G}, s{S_X}, 15\ns_add_u32 s{S_G}, s{S_G}, {WS_RA}\ns_lshl_b32 s{S_G+1}, s{S_J}, 10\ns_add_u32 s{S_G+1}, s{S_G+1}, s{S_G}")
    a(f"v_lshlrev_b32 v{vT3}, 8, v{vT2}\nv_add_u32 v{vT3}, s{S_G+1}, v{vT3}")
    a(f"v_and_b32 v{vStA}, 15, v0\nv_lshl_add_u32 v{vStA}, v{vStA}, 3, v{vT3}")
    a(f"v_lshl_add_u32 v{vStO}, v{vT0}, 4, v{vT3}\nv_lshl_add_u32 v{vStO}, v{vT1}, 31, v{vStO}")
    a(f"s_lshl_b32 s{S_G+2}, s{sRot}, 11\ns_add_u32 s{S_G+2}, s{S_G+2}, s{S_G}")
    a(f"v_lshrrev_b32 v{vT3}, 3, v0\nv_lshlrev_b32 v{vT3}, 8, v{vT3}\nv_lshl_add_u32 v{vT3}, v{vT0}, 4, v{vT3}\nv_add_u32 v{vLdA}, s{S_G+2}, v{vT3}")
    for t in range(1, 4): a(f"v_xor_b32 v{vLdAx[t]}, {t * 2048}, v{vLdA}")
    a(f"v_add_u32 v{vPzA}, s{S_G+1}, v{vL16}")
    a(f"s_lshl_b32 s{S_G+2}, s{sH}, 13\ns_add_u32 s{S_G+2}, s{S_G+2}, {WS_RS}")
    a(f"v_add_u32 v{vLdX}, s{S_G+2}, v{vL16}")
    a(f"s_lshl_b32 s{S_G+3}, s{sC}, 10\nv_add_u32 v{vPzS}, s{S_G+3}, v{vLdX}\nv_lshl_add_u32 v{vStX}, v{vT1}, 31, v{vPzS}")
    a(f"v_lshlrev_b32 v{vT3}, 2, v0\ns_add_u32 s{S_G+2}, s{S_G+2}, 4096\nv_add_u32 v{vLdM}, s{S_G+2}, v{vT3}")
    a(f"s_lshl_b32 s{S_G+3}, s{sC}, 8\ns_add_u32 s{S_G+2}, s{S_G+2}, s{S_G+3}")
    a(f"v_and_b32 v{vT3}, 1, v{vT2}\nv_lshlrev_b32 v{vT3}, 4, v{vT3}\nv_lshl_add_u32 v{vT3}, v{vT0}, 5, v{vT3}\nv_add_u32 v{vStM}, s{S_G+2}, v{vT3}")
    a(f"v_xor_b32 v{vT3}, 8, v0\nv_and_b32 v{vT3}, 40, v{vT3}\nv_min_u32 v{vT3}, 1, v{vT3}\nv_lshl_add_u32 v{vStM}, v{vT3}, 31, v{vStM}")
    a(f"s_lshr_b32 s{S_G+2}, s{S_J}, 1\ns_lshl_b32 s{S_G+2}, s{S_G+2}, 14\ns_and_b32 s{S_G+3}, s{S_J}, 1\ns_lshl_b32 s{S_G+3}, s{S_G+3}, 12")
    a(f"s_add_u32 s{S_G+2}, s{S_G+2}, s{S_G+3}\ns_lshl_b32 s{S_G+3}, s{S_X}, 10\ns_add_u32 s{S_G+2}, s{S_G+2}, s{S_G+3}\ns_add_u32 s{S_G+2}, s{S_G+2}, {WS_RC}")
    a(f"v_add_u32 v{vStC}, s{S_G+2}, v{vL16}")
    for k in range(3): a(f"v_xor_b32 v{vLdC[k]}, {(k+1)*1024}, v{vStC}")
    a(f"s_lshr_b32 s{S_G+2}, s{S_J}, 3\ns_lshl_b32 s{S_G+2}, s{S_G+2}, 14\ns_and_b32 s{S_G+3}, s{S_J}, 7\ns_lshl_b32 s{S_G+3}, s{S_G+3}, 10")
    a(f"s_add_u32 s{S_G+2}, s{S_G+2}, s{S_G+3}\ns_lshl_b32 s{S_G+3}, s{S_X}, 8\ns_add_u32 s{S_G+2}, s{S_G+2}, s{S_G+3}\ns_add_u32 s{sFc}, s{S_G+2}, {WS_FC}")
    a(f"s_lshl_b32 s{S_G+2}, s{S_X}, 5\ns_add_u32 s{S_G+2}, s{S_G+2}, s{S_J}\ns_lshl_b32 s{S_G+3}, s{S_G+2}, 11")
    a(f"v_lshl_add_u32 v{vT3}, v{vT1}, 4, v{vT0}\nv_lshlrev_b32 v{vT3}, 4, v{vT3}\nv_lshl_add_u32 v{vT3}, v{vT2}, 9, v{vT3}")
    a(f"v_add_u32 v{vLdK[0]}, s{S_G+3}, v{vT3}")
    a(f"v_bfe_u32 v{vT3}, v0, 2, 2\nv_and_b32 v{vVmW}, 3, v0\nv_lshl_add_u32 v{vVmW}, v{vT3}, 3, v{vVmW}\nv_lshlrev_b32 v{vVmW}, 4, v{vVmW}")
    a(f"v_lshl_add_u32 v{vT3}, v{vT2}, 9, v{vVmW}\ns_add_u32 s{S_G+3}, s{S_G+3}, {WS_VX}\nv_add_u32 v{vLdV[0]}, s{S_G+3}, v{vT3}")
    a(f"v_lshl_add_u32 v{vVmW}, v{vT2}, 2, v{vVmW}\nv_add_u32 v{vVmW}, {KVM + 1024}, v{vVmW}")
    a(f"v_lshrrev_b32 v{vT3}, 3, v0\nv_lshlrev_b32 v{vT3}, 8, v{vT3}\nv_lshl_add_u32 v{vT3}, v{vT0}, 4, v{vT3}\nv_add_u32 v{vT3}, {KVM + 128}, v{vT3}")
    a(f"v_add_u32 v{vKvmR}, {KVM + 512}, v{vL16}\nv_cmp_gt_u32 vcc, 32, v0\nv_cndmask_b32 v{vKvmR}, v{vKvmR}, v{vT3}, vcc")
    a(f"s_lshl_b32 s{S_G+3}, s{S_G+2}, 10\ns_add_u32 s{S_G+3}, s{S_G+3}, {WS_KVM}\nv_add_u32 v{vStKVM}, s{S_G+3}, v{vL16}")
    a(f"s_lshl_b32 s{S_G+3}, s{sH}, 7\ns_add_u32 s{S_G+3}, s{S_G+3}, {FL_KV}\ns_lshl_b32 s{S_G+2}, s{S_W}, 1\ns_add_u32 s{S_G+2}, s{S_G+2}, s{S_G+3}\nv_mov_b32 v{vFlA}, s{S_G+2}\ns_lshl_b32 s{S_G+2}, s{sC}, 3\nv_add_u32 v{vFlA}, s{S_G+2}, v{vFlA}")
    a(f"s_lshl_b32 s{S_G+2}, s{sC}, 2\ns_add_u32 s{S_G+3}, s{S_G+3}, s{S_G+2}\ns_add_u32 s{S_G+3}, s{S_G+3}, {FL_M - FL_KV}")
    a(f"v_mov_b32 v{vFlM}, s{S_G+3}\nv_cmp_eq_u32 vcc, 0, v0\nv_mov_b32 v{vT3}, {OOB}\nv_cndmask_b32 v{vFlM}, v{vT3}, v{vFlM}, vcc")
    ER = o.get('erep', 4)
    a(f"s_lshl_b32 s{S_G+2}, s{S_X}, 11\ns_add_u32 s{S_G+2}, s{S_G+2}, {FL_EO}\ns_lshl_b32 s{S_G+3}, s{S_J}, 2\ns_add_u32 s{S_G+3}, s{S_G+3}, s{S_G+2}")
    a(f"v_lshlrev_b32 v{vEoS}, 8, v0\nv_add_u32 v{vEoS}, s{S_G+3}, v{vEoS}\nv_cmp_gt_u32 vcc, {ER}, v0\nv_cndmask_b32 v{vEoS}, v{vT3}, v{vEoS}, vcc")
    a(f"s_and_b32 s{S_G+3}, s{S_J}, {ER-1}\ns_lshl_b32 s{S_G+3}, s{S_G+3}, 8\ns_add_u32 s{S_G+3}, s{S_G+3}, s{S_G+2}")
    a(f"v_and_b32 v{vEoL}, 31, v0\nv_lshlrev_b32 v{vEoL}, 2, v{vEoL}\nv_add_u32 v{vEoL}, s{S_G+3}, v{vEoL}")
    a(f"s_lshl_b32 s{S_G+2}, s{sH}, 8\ns_add_u32 s{S_G+2}, s{S_G+2}, {FL_ES}\ns_lshl_b32 s{S_G+3}, s{sC}, 2\ns_add_u32 s{S_G+3}, s{S_G+3}, s{S_G+2}")
    a(f"v_mov_b32 v{vEsS}, s{S_G+3}\nv_cmp_eq_u32 vcc, 0, v0\nv_cndmask_b32 v{vEsS}, v{vT3}, v{vEsS}, vcc")
    a(f"v_and_b32 v{vEsL}, 3, v0\nv_lshlrev_b32 v{vEsL}, 2, v{vEsL}\nv_add_u32 v{vEsL}, s{S_G+2}, v{vEsL}")
    a(f"s_lshr_b32 s{S_G+2}, s{S_W}, 1\ns_lshl_b32 s{S_G+2}, s{S_G+2}, 10\ns_and_b32 s{S_G+3}, s{S_W}, 1\ns_lshl_b32 s{S_G+3}, s{S_G+3}, 3")
    a(f"s_add_u32 s{S_G+2}, s{S_G+2}, s{S_G+3}\ns_add_u32 s{S_G+2}, s{S_G+2}, {VP}\nv_add_u32 v{vVpW}, s{S_G+2}, v{vL16}")
    a(f"v_add_u32 v{vL16}, {LDS_MISC}, v{vL16}")
    a(f"v_mov_b32 v{vIdx}, 0x4444\nv_mul_u32_u24 v{vT3}, 0xaaaa, v{vT1}\nv_add_u32 v{vIdx}, v{vIdx}, v{vT3}")
    a(f"v_and_b32 v{vA}, 15, v0\nv_and_b32 v{vA+1}, 1, v{vT2}\nv_lshlrev_b32 v{vA+1}, 2, v{vA+1}\nv_sub_u32 v{vA+2}, v{vA}, v{vA+1}")
    a(f"v_mov_b32 v{vA+4}, 0x3f80\nv_mov_b32 v{vA+5}, 0x3f800000")
    for p in range(4):
        t = 8 * (p >> 1) + 2 * (p & 1)
        a(f"v_cmp_eq_u32 vcc, {t}, v{vA+2}\nv_cndmask_b32 v{vSel+p}, 0, v{vA+4}, vcc")
        a(f"v_cmp_eq_u32 vcc, {t+1}, v{vA+2}\nv_cndmask_b32 v{vSel+p}, v{vSel+p}, v{vA+5}, vcc")
    a(f"v_lshrrev_b32 v{vA+3}, 2, v{vA}\nv_and_b32 v{vA+6}, 1, v{vA}\nv_lshl_add_u32 v{vA+3}, v{vA+3}, 1, v{vA+6}")
    a(f"v_and_b32 v{vA+6}, 2, v{vA}\nv_lshl_add_u32 v{vA+3}, v{vA+6}, 5, v{vA+3}\nv_sub_u32 v{vA+3}, v{vA+3}, v{vA+1}")
    for p in range(4):
        t = 2 * (p & 1)
        a(f"v_cmp_eq_u32 vcc, {t}, v{vA+3}\nv_cndmask_b32 v{vSelV+p}, 0, v{vA+4}, vcc")
        a(f"v_cmp_eq_u32 vcc, {t+1}, v{vA+3}\nv_cndmask_b32 v{vSelV+p}, v{vSelV+p}, v{vA+5}, vcc")
    a(f"v_sub_u32 v{vA+2}, v{vA+2}, v{vA+1}")
    for p in range(4):
        t = 4 * (p & 1) + (p >> 1)
        a(f"v_cmp_eq_u32 vcc, {t}, v{vA+2}\nv_cndmask_b32 v{vSelW+p}, 0, v{vA+4}, vcc")
        a(f"v_cmp_eq_u32 vcc, {t+2}, v{vA+2}\nv_cndmask_b32 v{vSelW+p}, v{vSelW+p}, v{vA+5}, vcc")
    for p in range(4): a(f"v_mov_b32 v{vOnes+p}, 0x3f803f80")
    a(f"s_mov_b32 s{sScale}, {hex(f32bits(128 ** -0.5 * math.log2(math.e)))}")

    a(f"s_lshl_b32 s{S_G}, s{S_W}, 17\ns_lshl_b32 s{S_G+1}, s{S_W}, 18")
    a(f"buffer_store_dwordx4 v[{vPoison}:{vPoison+3}], v{vPzA}, {WS}, s{S_G} offen")
    a(f"buffer_store_dwordx4 v[{vPoison}:{vPoison+3}], v{vPzS}, {WS}, s{S_G+1} offen")
    a(f"buffer_store_dwordx4 v[{vPoison}:{vPoison+3}], v{vStM}, {WS}, s{S_G+1} offen")
    a(f"s_lshr_b32 s{S_G}, s{S_W}, 1\ns_lshl_b32 s{S_G}, s{S_G}, 18\ns_and_b32 s{S_G+1}, s{S_W}, 1\ns_lshl_b32 s{S_G+1}, s{S_G+1}, 13\ns_add_u32 s{S_G}, s{S_G}, s{S_G+1}")
    a(f"buffer_store_dwordx4 v[{vPoison}:{vPoison+3}], v{vStC}, {WS}, s{S_G} offen sc1")
    l = a.label('m0')
    a(f"s_cmp_lg_u32 s{S_W}, 0\ns_cbranch_scc1 {l}")
    a(f"v_mov_b32 v{vT3}, 0\nbuffer_store_dword v{vT3}, v{vFlM}, {WS}, 0 offen sc1")
    a(f"buffer_store_dword v{vT3}, v{vEoS}, {WS}, 0 offen\nbuffer_store_dword v{vT3}, v{vEsS}, {WS}, 0 offen")
    a(f"buffer_store_dword v{vT3}, v{vEoS}, {WS}, 0 offen offset:128")
    a(f"v_and_b32 v{vOut}, 1, v0\nv_lshlrev_b32 v{vOut}, 13, v{vOut}\nbuffer_store_dword v{vT3}, v{vOut}, {WS}, s{sFc} offen sc1")
    srd(a, S_T, P_MEM0, 16384)
    a(f"v_bfe_u32 v{vT3}, v0, 1, 3\nv_lshlrev_b32 v{vT3}, 11, v{vT3}\nv_lshl_add_u32 v{vT3}, v{vT2}, 4, v{vT3}\nv_and_b32 v{vOut}, 1, v0\nv_lshl_add_u32 v{vT3}, v{vOut}, 3, v{vT3}\ns_lshl_b32 s{S_G}, s{S_J}, 6")
    a(f"buffer_load_dwordx2 v[{vOut}:{vOut+1}], v{vT3}, s[{S_T}:{S_T+3}], s{S_G} offen\ns_waitcnt vmcnt(0)")
    a(f"v_min_u32 v{vOut}, -2, v{vOut}\nv_min_u32 v{vOut+1}, -2, v{vOut+1}")
    a(f"buffer_store_dwordx2 v[{vOut}:{vOut+1}], v{vStA}, {WS}, 0 offen")
    a(f"{l}:")

    for b, p in enumerate((P_WQ, P_WK, P_WV, P_WO)): srd(a, S_B0 + 4 * b, p, 8 << 20)
    a(f"v_lshrrev_b32 v{vT3}, 2, v0\nv_and_b32 v{vWo}, 3, v0\nv_lshlrev_b32 v{vWo}, 4, v{vWo}")
    a(f"v_lshl_add_u32 v{vWq}, v{vT3}, 13, v{vWo}\nv_lshl_add_u32 v{vWo}, v{vT3}, 11, v{vWo}")
    a(f"s_lshl_b32 s{sRow}, s{sRot}, 19\ns_lshl_b32 s{S_G}, s{S_X}, 11\ns_add_u32 s{sRow}, s{sRow}, s{S_G}\ns_lshl_b32 s{S_G}, s{S_J}, 6\ns_add_u32 s{sRow}, s{sRow}, s{S_G}")
    a(f"s_lshl_b32 s{sRowO}, s{S_X}, 21\ns_add_u32 s{sRowO}, s{sRowO}, s{S_G}\ns_lshl_b32 s{S_G}, s{sRot}, 17\ns_add_u32 s{sRowO}, s{sRowO}, s{S_G}")
    a(f"v_lshrrev_b32 v{vA}, 5, v0\nv_lshlrev_b32 v{vA}, 4, v{vA}\nv_lshl_add_u32 v{vA}, v{vT1}, 3, v{vA}")
    a(f"v_and_b32 v{vA+1}, 1, v{vT2}\nv_lshl_add_u32 v{vA}, v{vA+1}, 2, v{vA}\nv_bfe_u32 v{vA+1}, v0, 2, 1\nv_add_u32 v{vA}, v{vA}, v{vA+1}")
    a(f"v_lshlrev_b32 v{vA}, 6, v{vA}\ns_lshl_b32 s{S_G}, s{S_W}, 15\nv_add_u32 v{vA}, s{S_G}, v{vA}")
    a(f"v_and_b32 v{vA+1}, 3, v0\nv_lshl_add_u32 v{vTrV}, v{vA+1}, 4, v{vA}")
    a(f"v_and_b32 v{vA+1}, 1, v0\nv_lshl_add_u32 v{vTrQ}, v{vA+1}, 3, v{vA}\nv_bfe_u32 v{vA+1}, v0, 1, 1\nv_lshl_add_u32 v{vTrQ}, v{vA+1}, 5, v{vTrQ}")
    def wreg(blk, t, tile): return blk * 64 + (t * 2 + tile) * 8
    def trfun(ch):
        blk, half = ch // 2, ch % 2
        out = []
        for tt in range(2):
            for tile in range(2):
                for p in range(4):
                    row = 64 * tt + 32 * (p >> 1) + 2 * (p & 1)
                    if blk < 2: out.append((wreg(blk, 2 * half + tt, tile) + 2 * p, vTrQ, row * 64 + tile * 16))
                    else:       out.append((wreg(blk, 2 * half + tt, tile) + 2 * p, vTrV, row * 64 + tile * 8))
        return out
    def src(ch):
        blk = ch // 2; pitch = 8192 if blk < 3 else 2048
        return (S_B0 + 4 * blk, vWq if blk < 3 else vWo, sRow if blk < 3 else sRowO, [((ch % 2) * 128 + 16 * i) * pitch for i in range(8)])
    load_weights(a, 8, src, trfun, after_first=lambda: arrive(a))
    tl(a, 2)
    wait_all_arrived(a)
    tl(a, 3)
    a(f"s_add_u32 s{sFc}, s{sFc}, s{S_PAR}")
    for k in range(1, 4): a(f"s_xor_b32 s{sFc+k}, s{sFc}, {256*k}")
    a(f"s_mov_b32 s{sOne}, 1\ns_mov_b32 s{sCnt}, 0\ns_mov_b32 s{sTgt}, 0")
    if stamps:
        a(f"s_lshl_b32 s{S_G}, s{S_X}, 5\ns_add_u32 s{S_G}, s{S_G}, s{S_J}\ns_lshl_b32 s{S_G}, s{S_G}, 2\ns_add_u32 s{S_G}, s{S_G}, s{S_W}\ns_lshl_b32 s{S_G}, s{S_G}, 12")
        a(f"s_add_u32 s{S_G}, s{S_G}, {WS_DBG}\nv_lshlrev_b32 v{vStampA}, 2, v0\nv_add_u32 v{vStampA}, s{S_G}, v{vStampA}")
        a(f"v_cmp_gt_u32 vcc, 16, v0\nv_mov_b32 v{vT3}, {OOB}\nv_cndmask_b32 v{vStampA}, v{vT3}, v{vStampA}, vcc\nv_mov_b32 v{vStamp}, 0")
    a(f"s_mov_b32 s{sS}, 0\ns_mov_b32 s{sKV}, 0\ns_mov_b32 s{sSeg}, 0")
    for w in (1, 2, 3): a(f"s_cmp_eq_u32 s{S_W}, {w}\ns_cbranch_scc1 L_rec_w{w}")

    NST = 8
    STN = o.get('stn', ['top', 'qk', 'B1', 'Sst', 'Sok', 'B3', 'wo', 'B4'])
    def stamp(name):
        if stamps and name in STN:
            k = STN.index(name); a(f"s_memtime s[{sStamp+2*k}:{sStamp+2*k+1}]")
        if stamps and 'R' + name in STN:
            k = STN.index('R' + name); a(f"s_memrealtime s[{sStamp+2*k}:{sStamp+2*k+1}]")
    def flush_stamps():
        if not stamps: return
        a("s_waitcnt lgkmcnt(0)")
        for k in range(NST): a(f"v_writelane_b32 v{vStamp}, s{sStamp+2*k}, {k}")
        a(f"v_writelane_b32 v{vStamp}, s{S_BUD}, 15")
        a(f"s_lshl_b32 s{S_G}, s{sS}, 6\nbuffer_store_dword v{vStamp}, v{vStampA}, {WS}, s{S_G} offen")

    def smf(acc, t, blk, tile):
        w = wreg(blk, t, tile)
        a(f"v_smfmac_f32_16x16x64_bf16 v[{acc}:{acc+3}], v[{vA+4*t}:{vA+4*t+3}], a[{w}:{w+7}], v{vIdx}")
    def mfma(d, A, B, c0=False):
        a(f"v_mfma_f32_16x16x32_bf16 v[{d}:{d+3}], v[{A}:{A+3}], v[{B}:{B+3}], " + ("0" if c0 else f"v[{d}:{d+3}]"))
    def cvt(d, s0, s1): a(f"v_cvt_pk_bf16_f32 v{d}, v{s0}, v{s1}")

    def nops(n):
        while n > 0:
            k = min(n, 16); a(f"s_nop {k-1}"); n -= k

    sD = S_G + 2
    def gather(sOff, work, tails, delay, nm, split, shadow=None):
        nops(delay)
        stamp(nm + 'ld')
        ld = lambda t: f"buffer_load_dwordx4 v[{vA+4*t}:{vA+4*t+3}], v{vLdAx[t]}, {WS}, s{sOff} offen sc1"
        for t in range(4):
            a(ld(t))
            if t < 3: nops(GAP)
        ent = [a.label('ge') for _ in range(4)]; blk = [a.label('gb') for _ in range(4)]; fin = a.label('gx'); p2 = a.label('gp')
        def chk(t, st=True):
            a(f"s_waitcnt vmcnt({3-t})")
            if st: stamp(nm + str(t))
            a(f"v_cmp_eq_u32 vcc, -1, v{vA+4*t}")
        if shadow: shadow()
        chk(0)
        for t in range(4):
            a(f"{blk[t]}:")
            a(f"s_cbranch_vccnz {ent[t]}")
            ws = work(t)
            if t < 3:
                for f in ws[:split]: f()
                chk(t + 1)
                for f in ws[split:]: f()
            else:
                for f in ws: f()
        a(f"{fin}:")
        def slow():
            sb = [a.label('gs') for _ in range(4)]
            for t in range(4):
                a(f"{ent[t]}:")
                if t:
                    a("s_mov_b64 exec, 1")
                    for u in range(t): a(ld(u))
                a(f"s_mov_b64 exec, vcc\n{ld(t)}\ns_mov_b64 exec, -1\ns_mov_b32 s{sD}, {(1 << t) - 1}")
                if t < 3: a(f"s_branch {sb[t+1]}")
            for t in range(4):
                nx = a.label('gn')
                a(f"{sb[t]}:")
                a(f"s_waitcnt vmcnt(3)\nv_cmp_eq_u32 vcc, -1, v{vA+4*t}\ns_bitcmp1_b32 s{sD}, {t}\ns_cbranch_scc1 {nx}\ns_cbranch_vccnz {nx}")
                ws = work(t)
                ws[0]()
                a(f"s_bitset1_b32 s{sD}, {t}\ns_cmp_eq_u32 s{sD}, 15")
                for f in ws[1:]: f()
                a(f"s_cbranch_scc1 {fin}")
                a(f"{nx}:")
                a(f"s_or_b64 exec, vcc, 1\n{ld(t)}\ns_mov_b64 exec, -1")
            a(f"s_sub_u32 s{S_BUD}, s{S_BUD}, 1\ns_cbranch_scc0 {sb[0]}\ns_branch L_abort")
        tails.append(slow)

    def kv_check(tails):
        lp = a.label('kvp'); lo = a.label('kvo')
        a(f"s_lshr_b32 s{S_G}, s{sSeg}, 18\nv_readfirstlane_b32 s{sKV}, v{vFl}")
        a(f"s_cmp_le_u32 s{sKV}, s{S_G}\ns_cbranch_scc1 {lp}")
        a(f"{lo}:")
        tails.append(f"{lp}:\nbuffer_load_dword v{vFl}, v{vFlA}, {WS}, 0 offen sc1\ns_sub_u32 s{S_BUD}, s{S_BUD}, 1\ns_cbranch_scc1 L_abort\n"
                     f"s_waitcnt vmcnt(0)\nv_readfirstlane_b32 s{sKV}, v{vFl}\ns_nop 0\ns_cmp_le_u32 s{sKV}, s{S_G}\ns_cbranch_scc1 {lp}\ns_branch {lo}")
    def kv_load(vLd, step):
        for t in range(2):
            a(f"buffer_load_dwordx4 v[{vKx[t]}:{vKx[t]+3}], v{vLd}, {WS}, s{sSeg} offen offset:{step*t} sc1")
        a(f"buffer_load_dword v{vFl}, v{vFlA}, {WS}, 0 offen sc1")
        a(f"s_add_u32 s{sSeg}, s{sSeg}, 0x40000")

    sSlOld = S_G + 1
    def slots():
        for f in [f"s_and_b32 s{S_G}, s{sS}, 3", f"s_lshl_b32 s{sSlS}, s{S_G}, 18", f"s_lshl_b32 s{sSlO}, s{S_G}, 17",
                  f"s_xor_b32 s{sPz}, s{sSlO}, 0x40000", f"s_xor_b32 s{sPzS}, s{sSlS}, 0x80000",
                  f"s_add_u32 s{sSlAn}, s{sSlO}, 0x20000", f"s_and_b32 s{sSlAn}, s{sSlAn}, 0x60000",
                  f"s_and_b32 s{sSlC}, s{sSlS}, 0x40000", f"s_add_u32 s{sSlC}, s{sSlC}, s{S_PAR}", f"s_lshr_b32 s{sTag}, s{S_G}, 1",
                  f"s_add_u32 s{sSlOld}, s{sSlO}, 128", f"s_add_u32 s{S_G}, s{sS}, 1", f"v_mov_b32 v{vStep}, s{S_G}"]: a(f)
    def zero(rs):
        for r in rs:
            for i in range(4): a(f"v_mov_b32 v{r+i}, 0")
    def pk(op, d, x, y, mods=""): a(f"v_pk_{op}_f32 v[{d}:{d+1}], v[{x}:{x+1}], v[{y}:{y+1}] {mods}")
    def eflag_wait(vAddr, vE, depth, pace, off=0):
        lp = a.label('ep')
        a(f"{lp}:")
        a(f"buffer_load_dword v{vE}, v{vAddr}, {WS}, 0 offen offset:{off} sc1")
        nops(pace)
        a(f"s_waitcnt vmcnt({depth})\nv_cmp_ge_u32 vcc, s{sS}, v{vE}\ns_sub_u32 s{S_BUD}, s{S_BUD}, 1\ns_cbranch_scc1 L_abort\ns_cbranch_vccnz {lp}")
    def kvm_store():
        a(f"buffer_store_dwordx4 v[{vOut}:{vOut+3}], v{vStKVM}, {WS}, s{S_G} offen sc1")
        a(f"buffer_store_dword v{vT0}, v{vFlM}, {WS}, 0 offen sc1")

    BGE = o.get('bge', 1)
    def background(w):
        if o.get('nokv'): return
        if w == 0: kv_load(vLdK[0], 128)
        if w == 2: kv_load(vLdV[0], 64)
        if w == 3: kvm_store()
    for w in range(4):
        tails = []
        a(f"L_rec_w{w}:")
        if w in (0, 2):
            a(f"v_mov_b32 v{vFl}, 0")
            kv_check(tails); kv_load(vLdK[0] if w == 0 else vLdV[0], 128 if w == 0 else 64)
        if w == 2:
            zero([vVm[0], vVm[1], vPm])
            a(f"v_mov_b32 v{vMx}, s{sScale}\nv_mov_b32 v{vMx+1}, s{sScale}")
        zero(aQ + aK + aV + aW + [vEp])
        slots()
        a(f"s_mov_b32 s{sSlA}, 0")
        a(".p2align 6")
        a(f"L_rec_loop{w}:")
        a("s_barrier")
        stamp('top')
        workA = lambda t: [lambda: smf(aQ[0], t, 0, 0), lambda: smf(aK[0], t, 1, 0), lambda: smf(aQ[1], t, 0, 1), lambda: smf(aK[1], t, 1, 1)]
        gather(sSlA, workA, tails, o.get('adelay', 44), 'A', 2)
        stamp('qk')
        vs = [(aV[tile], t, 2, tile) for t in range(4) for tile in range(2)]
        for tile in range(2):
            cvt(vP[tile], aQ[tile], aQ[tile] + 1); cvt(vP[tile] + 1, aQ[tile] + 2, aQ[tile] + 3)
            cvt(vP[tile] + 2, aK[tile], aK[tile] + 1); cvt(vP[tile] + 3, aK[tile] + 2, aK[tile] + 3)
            if w: a(f"ds_write_b128 v{vL16}, v[{vP[tile]}:{vP[tile]+3}] offset:{w*2048 + tile*1024}")
            elif tile == 0: smf(*vs.pop(0))
        def vpart():
            for tile in range(2):
                cvt(vP[0] + 2 * tile, aV[tile], aV[tile] + 1); cvt(vP[0] + 2 * tile + 1, aV[tile] + 2, aV[tile] + 3)
            a(f"ds_write2st64_b64 v{vVpW}, v[{vP[0]}:{vP[0]+1}], v[{vP[0]+2}:{vP[0]+3}] offset0:0 offset1:4")
        if w:
            for _ in range(3): smf(*vs.pop(0))
            a("s_waitcnt lgkmcnt(0)\ns_barrier")
            if w == 3:
                if ES: a(f"buffer_store_dword v{vStep}, v{vEsS if ES == 1 else vEoS}, {WS}, 0 offen")
            while vs: smf(*vs.pop(0))
            vpart()
            if w == 1: slots()
            if w == 2 and ES: eflag_wait(vEsL if ES == 1 else vEoL, vEp, o.get('edepth', 8), o.get('epace', 0))
            a("s_waitcnt lgkmcnt(0)\ns_barrier")
            stamp('B2')
        else:
            mfma(vF2[0], vP[0], vSel, True); mfma(vF2[1], vP[1], vSel, True)
            for _ in range(4): smf(*vs.pop(0))
            a("s_barrier")
            stamp('B1')
            for i in range(6):
                a(f"ds_read_b128 v[{vR+4*i}:{vR+4*i+3}], v{vL16} offset:{2048 + 1024*i}")
                if i in (0, 2, 4): smf(*vs.pop(0))
            assert not vs
            for i in range(6):
                a(f"s_waitcnt lgkmcnt({5-i})")
                mfma(vF2[i & 1], vR + 4 * i, vSel)
                if i in (2, 3):
                    tile = i - 2
                    cvt(vP[0] + 2 * tile, aV[tile], aV[tile] + 1); cvt(vP[0] + 2 * tile + 1, aV[tile] + 2, aV[tile] + 3)
            a(f"ds_write2st64_b64 v{vVpW}, v[{vP[0]}:{vP[0]+1}], v[{vP[0]+2}:{vP[0]+3}] offset0:0 offset1:4")
            cvt(vF, vF2[0], vF2[0] + 1); cvt(vF + 1, vF2[0] + 2, vF2[0] + 3); cvt(vF + 2, vF2[1], vF2[1] + 1); cvt(vF + 3, vF2[1] + 2, vF2[1] + 3)
            mfma(vTx[0], vKx[0], vF, True); mfma(vTx[1], vKx[1], vF, True)
            a("s_waitcnt lgkmcnt(0)")
            mfma(vTm, vF, vF, True)
            a(f"buffer_store_dwordx4 v[{vTx[0]}:{vTx[0]+3}], v{vStX}, {WS}, s{sSlS} offen")
            a(f"buffer_store_dwordx4 v[{vTx[1]}:{vTx[1]+3}], v{vStX}, {WS}, s{sSlS} offen offset:128")
            a(f"buffer_store_dwordx4 v[{vTm}:{vTm+3}], v{vStM}, {WS}, s{sSlS} offen")
            stamp('Sst')
            a("s_barrier")
            a(f"ds_write_b128 v{vL16}, v[{vF}:{vF+3}] offset:{KVM - LDS_MISC}")
        if w != 2:
            a(f"s_cmp_eq_u32 s{sS}, 63\ns_cbranch_scc1 L_rec_fin{w}")
            zero(aQ + aK + aV)
            if w == 1: zero(aW)
            if w == 3 and EO:
                nops(o.get('eodelay', 40))
                eflag_wait(vEoL, vEp, o.get('edepth', 8), o.get('epace', 0))
                stamp('Eo')
            a("s_waitcnt lgkmcnt(0)\ns_barrier")
        else:
            def sloads():
                s = ""
                for c in range(4):
                    s += f"buffer_load_dwordx4 v[{vSX+4*c}:{vSX+4*c+3}], v{vLdX}, {WS}, s{sSlS} offen offset:{1024*c} sc1\n"
                    if c == 1:
                        for cc in range(4):
                            s += f"buffer_load_dword v{vSM+cc}, v{vLdM}, {WS}, s{sSlS} offen offset:{256*cc} sc1\n"
                return s
            for i in range(4):
                a(f"ds_read_b128 v[{vR+4*i}:{vR+4*i+3}], v{vL16} offset:{VP - LDS_MISC + 1024*i}")
            SD = o.get('ssets', 1)
            nops(o.get('sdelay', 6))
            stamp('Sld')
            a(sloads())
            for i in range(4):
                a(f"s_waitcnt lgkmcnt({3-i})")
                mfma(vVr[i >> 1], vSelV, vR + 4 * i, c0=(i & 1) == 0)
            if SD >= 3: a(sloads())
            for tile in range(2):
                cvt(vVm[tile], vVr[tile], vVr[tile] + 1)
                a(f"ds_write_b32 v{vVmW}, v{vVm[tile]} offset:{64*tile}")
            a(f"s_cmp_eq_u32 s{sS}, 63\ns_cbranch_scc1 L_rec_fin2")
            if SD >= 2:
                nops(o.get('sgap', 0)); a(sloads())
            ls = a.label('sw'); lr = a.label('srt'); lk = a.label('sok')
            a(f"{ls}:")
            t0, t1 = vTx[0], vTx[1]
            X = 8 * (SD - 1)
            a(f"s_waitcnt vmcnt({6+X})")
            stamp('S2')
            for i in (0, 2): pk('add', t0 + i, vSX + i, vSX + 4 + i)
            for i in (0, 2): pk('mul', t0 + i, t0 + i, vMx)
            a(f"s_waitcnt vmcnt({2+X})")
            pk('add', vTm, vSM, vSM + 2)
            a(f"v_add_f32 v{vTm}, v{vTm}, v{vTm+1}\nv_mul_f32 v{vTm}, s{sScale}, v{vTm}")
            a(f"s_waitcnt vmcnt({1+X})")
            for i in (0, 2): a(f"v_pk_fma_f32 v[{t0+i}:{t0+i+1}], v[{vSX+8+i}:{vSX+9+i}], v[{vMx}:{vMx+1}], v[{t0+i}:{t0+i+1}]")
            a(f"s_waitcnt vmcnt({X})")
            stamp('S8')
            for i in (0, 2): a(f"v_pk_fma_f32 v[{t0+i}:{t0+i+1}], v[{vSX+12+i}:{vSX+13+i}], v[{vMx}:{vMx+1}], v[{t0+i}:{t0+i+1}]")
            D = "row_mask:0xf bank_mask:0xf"
            a(f"v_maximum3_f32 v{vL}, v{t0}, v{t0+1}, v{vTm}")
            a(f"v_maximum3_f32 v{vL}, v{vL}, v{t0+2}, v{t0+3}")
            a(f"v_cmp_u_f32 vcc, v{vL}, v{vL}")
            a(f"v_max_f32_dpp v{vL}, v{vL}, v{vL} row_ror:8 {D}")
            a(f"v_mov_b32 v{vT1}, v{vL}\nv_permlane16_swap_b32 v{vL}, v{vT1}\nv_max_f32 v{vL}, v{vL}, v{vT1}")
            a(f"v_mov_b32 v{vT1}, v{vL}")
            a(f"s_cbranch_vccnz {lr}")
            a(f"{lk}:")
            if EO: a(f"buffer_store_dword v{vStep}, v{vEoS}, {WS}, 0 offen")
            tails.append(f"{lr}:\n" + sloads() + f"s_sub_u32 s{S_BUD}, s{S_BUD}, 1\ns_cbranch_scc0 {ls}\ns_branch L_abort")
            a(f"v_permlane32_swap_b32 v{vL}, v{vT1}\nv_max_f32 v{vL}, v{vL}, v{vT1}")
            stamp('Sok')
            for i in (0, 2): pk('add', t0 + i, t0 + i, vL, "op_sel_hi:[1,0] neg_lo:[0,1] neg_hi:[0,1]")
            a(f"v_sub_f32 v{vTm}, v{vTm}, v{vL}")
            for r in (t0, t0 + 1, t0 + 2, t0 + 3): a(f"v_exp_f32 v{r}, v{r}")
            cvt(vPf, t0, t0 + 1)
            a(f"v_exp_f32 v{vTm}, v{vTm}")
            cvt(vPf + 1, t0 + 2, t0 + 3)
            a(f"v_mov_b32_dpp v{vPf+2}, v{vPf} row_ror:8 {D}")
            a(f"v_mov_b32_dpp v{vT1}, v{vTm} row_ror:8 {D}")
            a(f"v_mov_b32_dpp v{vPf+3}, v{vPf+1} row_ror:8 {D}")
            cvt(vPm, vTm, vT1)
            mfma(vL, vOnes, vPf, True); mfma(vL, vOnes, vPm)
            mfma(vO[0], vVx[0], vPf, True); mfma(vO[0], vVm[0], vPm)
            mfma(vO[1], vVx[1], vPf, True)
            a(f"v_rcp_f32 v{vL}, v{vL}")
            mfma(vO[1], vVm[1], vPm)
            for tile in range(2):
                for i in (0, 2): pk('mul', vO[tile] + i, vO[tile] + i, vL, "op_sel_hi:[1,0]")
                cvt(vOut + 2 * tile, vO[tile], vO[tile] + 1); cvt(vOut + 2 * tile + 1, vO[tile] + 2, vO[tile] + 3)
            a(f"buffer_store_dwordx4 v[{vOut}:{vOut+3}], v{vStO}, {WS}, s{sSlOld} offen")
            stamp('Ost')
            a("s_waitcnt lgkmcnt(0)\ns_barrier")
        stamp('B3')
        workO = lambda t: [lambda: smf(aW[0], t, 3, 0), lambda: smf(aW[1], t, 3, 1)]
        def shadowO():
            if w in (0, 2) and not o.get('nokv'): kv_check(tails)
            if w == 3: a(f"ds_read_b128 v[{vOut}:{vOut+3}], v{vKvmR}\nv_mov_b32 v{vT0}, s{sS}\ns_lshl_b32 s{S_G}, s{sS}, 17\ns_waitcnt lgkmcnt(0)")
        gather(sSlOld, workO, tails, o.get('odelay', 28), 'O', o.get('osplit', 1), shadowO)
        stamp('wo')
        for tile in range(2):
            cvt(vP[0] + 2 * tile, aW[tile], aW[tile] + 1); cvt(vP[0] + 2 * tile + 1, aW[tile] + 2, aW[tile] + 3)
        if w != 1:
            a(f"ds_write_b128 v{vL16}, v[{vP[0]}:{vP[0]+3}] offset:{WP - LDS_MISC + 1024*w}")
            if BGE: background(w)
            a("s_waitcnt lgkmcnt(0)\ns_barrier")
            if w == 0 and EC:
                for k in range(1, 4): a(f"s_atomic_add s{sOne}, s[{P_WSP}:{P_WSP+1}], s{sFc+k}")
            if not BGE: background(w)
            stamp('B4')
            zero(aW)
            if w == 2: zero(aQ + aK + aV)
            if w == 0: tl(a, 16, sS)
            if w == 3:
                nops(o.get('pzdelay', 32))
                a(f"buffer_store_dwordx4 v[{vPoison}:{vPoison+3}], v{vPzA}, {WS}, s{sPz} offen")
                a(f"buffer_store_dwordx4 v[{vPoison}:{vPoison+3}], v{vPzS}, {WS}, s{sPzS} offen")
                a(f"buffer_store_dwordx4 v[{vPoison}:{vPoison+3}], v{vStM}, {WS}, s{sPzS} offen")
            flush_stamps()
            a(f"s_mov_b32 s{sSlA}, s{sSlAn}\ns_add_u32 s{sS}, s{sS}, 1")
            slots()
            if w == 3 and EA:
                nops(o.get('eapd', 100))
                eflag_wait(vEoL, vEp + 1, o.get('edepth', 8), o.get('epace', 0), 128)
                stamp('Ea')
        else:
            mfma(vF2[0], vP[0], vSelW, True)
            a("s_barrier")
            stamp('B4')
            for i, ww in enumerate((0, 2, 3)):
                a(f"ds_read_b128 v[{vR+4*i}:{vR+4*i+3}], v{vL16} offset:{WP - LDS_MISC + 1024*ww}")
            for i in range(3):
                a(f"s_waitcnt lgkmcnt({2-i})")
                mfma(vF2[0], vR + 4 * i, vSelW)
            a(f"v_and_or_b32 v{vF2[0]}, v{vF2[0]}, -2, s{sTag}")
            a(f"buffer_store_dwordx4 v[{vF2[0]}:{vF2[0]+3}], v{vStC}, {WS}, s{sSlC} offen sc1")
            stamp('Cst')
            flush_stamps()
            a(f"s_mov_b32 s{sSlA}, s{sSlAn}\ns_add_u32 s{sS}, s{sS}, 1")
            def cl(st):
                return "\n".join(f"buffer_load_dwordx4 v[{vC+12*st+4*k}:{vC+12*st+4*k+3}], v{vLdC[k]}, {WS}, s{sSlC} offen {o.get('cflav', 'sc1')}" for k in range(3))
            if EC:
                lp = a.label('ec')
                a(f"s_add_u32 s{sTgt}, s{sTgt}, 3\nv_add_u32 v{vStep}, 1, v{vStep}")
                a(f"{lp}:")
                a(f"s_load_dword s{sCnt}, s[{P_WSP}:{P_WSP+1}], s{sFc} glc")
                nops(o.get('ecpace', 4))
                a(f"s_sub_u32 s{S_BUD}, s{S_BUD}, 1\ns_cbranch_scc1 L_abort\ns_cmp_lt_u32 s{sCnt}, s{sTgt}\ns_cbranch_scc1 {lp}")
                stamp('Ec')
            nops(o.get('cdelay', 64))
            stamp('Cld')
            for st in range(NS):
                a(cl(st))
                if st < NS - 1: nops(o.get('cgap', 42))
            if EA:
                assert NS == 1
                nops(o.get('easd', 60))
                a(f"buffer_store_dword v{vStep}, v{vEoS}, {WS}, 0 offen offset:128")
            lp = a.label('cp'); done = a.label('cd')
            if EA: a("s_waitcnt vmcnt(1)")
            a(f"{lp}:")
            for st in range(NS):
                b = vC + 12 * st
                if not EA: a(f"s_waitcnt vmcnt({3*(NS-1)})")
                a(f"v_bitop3_b32 v{vT0}, v{b}, v{b+4}, v{vF2[0]} bitop3:0x7e")
                a(f"v_bitop3_b32 v{vT0}, v{vT0}, v{b+8}, v{vF2[0]} bitop3:0xf6")
                a(f"v_and_b32 v{vT0}, 1, v{vT0}\nv_cmp_ne_u32 vcc, 0, v{vT0}")
                for i in (0, 2): pk('add', vF2[1] + i, vF2[0] + i, b + i)
                for i in (0, 2): pk('add', vP[1] + i, b + 4 + i, b + 8 + i)
                for i in (0, 2): pk('add', vF2[1] + i, vF2[1] + i, vP[1] + i)
                a(f"s_cbranch_vccz {done}")
                a(cl(st))
                nops(o.get('cpace', 0))
                if EA: a("s_waitcnt vmcnt(0)")
            a(f"s_sub_u32 s{S_BUD}, s{S_BUD}, 1\ns_cbranch_scc0 {lp}\ns_branch L_abort")
            a(f"{done}:")
            cvt(vOut, vF2[1], vF2[1] + 1); cvt(vOut + 1, vF2[1] + 2, vF2[1] + 3)
            a(f"buffer_store_dwordx2 v[{vOut}:{vOut+1}], v{vStA}, {WS}, s{sSlA} offen")
            stamp('Ast')
        a(f"s_branch L_rec_loop{w}")
        a(f"L_rec_fin{w}:")
        if w == 3: a(f"v_mov_b32 v{vT0}, 63\nbuffer_store_dword v{vT0}, v{vFlM}, {WS}, 0 offen sc1")
        a("s_waitcnt lgkmcnt(0)\ns_barrier")
        if w == 3:
            a(f"ds_read_b128 v[{vF2[0]}:{vF2[0]+3}], v{vKvmR}\ns_lshl_b32 s{S_G}, s{sS}, 17\ns_waitcnt lgkmcnt(0)")
            a(f"buffer_store_dwordx4 v[{vF2[0]}:{vF2[0]+3}], v{vStKVM}, {WS}, s{S_G} offen sc1")
            a(f"v_mov_b32 v{vT1}, 64\ns_waitcnt vmcnt(0)\nbuffer_store_dword v{vT1}, v{vFlM}, {WS}, 0 offen sc1")
        a("s_branch L_drain")
        for t in tails:
            if callable(t): t()
            else: a(t)
```

```python
from common import *
import math

WS = f"s[{S_WS}:{S_WS+3}]"
SX = f"s[{S_T}:{S_T+3}]"
sS, sRow, sM0, sSrc, sK, sT0, sT1, sT2 = range(S_G + 4, S_G + 12)
sKey = S_G + 12
D = 8
NORD = dict(on=False)
LOG2E = math.log2(math.e)

def cvt(a, d, s0, s1): a(f"v_cvt_pk_bf16_f32 v{d}, v{s0}, v{s1}")
def pk(a, op, d, x, y, mods=""): a(f"v_pk_{op}_f32 v[{d}:{d+1}], v[{x}:{x+1}], v[{y}:{y+1}] {mods}")
def m32(a, d, A, B, c): a(f"v_mfma_f32_32x32x16_bf16 v[{d}:{d+15}], {A}, {B}, {c}")

def lane1(a, vd, s, vt):
    a(f"v_mov_b32 v{vd}, s{s}\nv_cmp_eq_u32 vcc, 0, v0\nv_mov_b32 v{vt}, {OOB}\nv_cndmask_b32 v{vd}, v{vt}, v{vd}, vcc")

def poll(a, vA, vD, sThr, sleep=2):
    lp = a.label('pl'); ok = a.label('pk')
    a(f"{lp}:")
    a(f"buffer_load_dword v{vD}, v{vA}, {WS}, 0 offen sc1\ns_waitcnt vmcnt(0)")
    a(f"v_cmp_ge_u32 vcc, {sThr}, v{vD}\ns_cbranch_vccz {ok}")
    a(f"s_sleep {sleep}\ns_sub_u32 s{S_BUD}, s{S_BUD}, 1\ns_cbranch_scc0 {lp}\ns_branch L_abort")
    a(f"{ok}:")

class Gemm:
    def __init__(self, a, V, otype, o):
        self.a = a; self.otype = otype; self.DS = o.get('ds', 3)
        self.vW = V(); self.vSrc = V(); self.vT = V(); self.vU = V(); self.vPf = V(); self.vJ = V()
        self.vRd = [V(), V()]
        self.acc = V(16, 4)
    def weights(self, ptr, pitch_log2, after_first, sKq=None):
        a = self.a; vT, vU = self.vT, self.vU; vTr = self.vRd
        srd(a, S_B0, ptr, 8 << 20)
        a(f"v_lshrrev_b32 v{vT}, 2, v0\nv_and_b32 v{self.vW}, 3, v0\nv_lshlrev_b32 v{self.vW}, 4, v{self.vW}\nv_lshl_add_u32 v{self.vW}, v{vT}, {pitch_log2}, v{self.vW}")
        a(f"v_bfe_u32 v{vU}, v0, 2, 2\ns_lshl_b32 s{S_G}, s{S_W}, 15")
        if self.otype:
            a(f"v_lshrrev_b32 v{vT}, 5, v0\nv_lshl_add_u32 v{vU}, v{vT}, 4, v{vU}\nv_bfe_u32 v{vT}, v0, 4, 1\nv_lshl_add_u32 v{vU}, v{vT}, 2, v{vU}\nv_lshlrev_b32 v{vU}, 6, v{vU}")
            a(f"v_and_b32 v{vT}, 3, v0\nv_lshl_add_u32 v{vU}, v{vT}, 3, v{vU}\ns_and_b32 s{S_G+1}, s{sKq}, 1\ns_lshl_b32 s{S_G+1}, s{S_G+1}, 5\ns_add_u32 s{S_G}, s{S_G}, s{S_G+1}")
            a(f"v_add_u32 v{vTr[0]}, s{S_G}, v{vU}\nv_xor_b32 v{vTr[1]}, 32, v{vTr[0]}")
        else:
            a(f"v_lshrrev_b32 v{vT}, 4, v0\nv_lshl_add_u32 v{vU}, v{vT}, 3, v{vU}\nv_lshlrev_b32 v{vU}, 6, v{vU}")
            a(f"v_bfe_u32 v{vT}, v0, 1, 1\nv_lshl_add_u32 v{vU}, v{vT}, 5, v{vU}\nv_and_b32 v{vT}, 1, v0\nv_lshl_add_u32 v{vU}, v{vT}, 3, v{vU}")
            a(f"v_add_u32 v{vTr[0]}, s{S_G}, v{vU}\nv_add_u32 v{vTr[1]}, 16, v{vTr[0]}")
        src = lambda ch: (S_B0, self.vW, sRow, [(128 * ch + 16 * i) << pitch_log2 for i in range(8)])
        tr = lambda ch: [(8 * (4 * ch + kk) + 4 * q + 2 * p, vTr[q], (32 * kk + (8 if self.otype else 4) * p) * 64)
                         for kk in range(4) for q in range(2) for p in range(2)]
        load_weights(a, 8, src, tr, after_first=after_first)
    def granule(self, vd):
        a = self.a; vT = self.vT
        a(f"v_and_b32 v{vd}, 7, v0\nv_lshlrev_b32 v{vd}, 4, v{vd}\nv_lshrrev_b32 v{vT}, 3, v0\nv_lshl_add_u32 v{vd}, v{vT}, 8, v{vd}")
    def addrs(self, sKq=None):
        a = self.a; vT, vU = self.vT, self.vU
        if self.otype:
            a(f"v_lshlrev_b32 v{vT}, 4, v0\ns_lshl_b32 s{S_G}, s{S_W}, 10\nv_add_u32 v{self.vSrc}, s{S_G}, v{vT}")
            a(f"v_and_b32 v{vT}, 15, v0\nv_lshlrev_b32 v{vT}, 4, v{vT}\nv_lshrrev_b32 v{vU}, 4, v0\nv_lshl_add_u32 v{vT}, v{vU}, 9, v{vT}")
            a(f"s_lshr_b32 s{S_G}, s{sKq}, 1\ns_lshl_b32 s{S_G}, s{S_G}, 8\nv_add_u32 v{self.vRd[0]}, s{S_G}, v{vT}\nv_xor_b32 v{self.vRd[1]}, 256, v{self.vRd[0]}")
        else:
            a(f"v_lshrrev_b32 v{vT}, 3, v0\ns_lshl_b32 s{S_G}, s{S_W}, 3\nv_add_u32 v{vT}, s{S_G}, v{vT}")
            a(f"s_lshr_b32 s{S_G}, s{S_W}, 1\ns_lshl_b32 s{S_G}, s{S_G}, 2\nv_lshrrev_b32 v{vU}, 4, v0\nv_or_b32 v{vU}, s{S_G}, v{vU}\nv_xor_b32 v{vU}, v{vU}, v0")
            a(f"v_and_b32 v{vU}, 7, v{vU}\nv_lshlrev_b32 v{vU}, 4, v{vU}\nv_lshl_add_u32 v{self.vSrc}, v{vT}, 11, v{vU}")
            a(f"v_bfe_u32 v{vT}, v0, 1, 3\nv_lshrrev_b32 v{vU}, 4, v0\nv_xor_b32 v{vT}, v{vT}, v{vU}\nv_lshlrev_b32 v{vT}, 4, v{vT}")
            a(f"v_and_b32 v{vU}, 7, v0\nv_lshl_add_u32 v{vT}, v{vU}, 7, v{vT}\nv_bfe_u32 v{vU}, v0, 3, 1\nv_lshl_add_u32 v{self.vRd[0]}, v{vU}, 11, v{vT}")
            a(f"v_xor_b32 v{self.vRd[1]}, 64, v{self.vRd[0]}")
            a(f"s_lshl_b32 s{S_G}, s{S_J}, 11\ns_lshl_b32 s{S_G+1}, s{S_W}, 9\ns_add_u32 s{S_G}, s{S_G}, s{S_G+1}\ns_add_u32 s{S_G}, s{S_G}, 0x20000")
            a(f"v_and_b32 v{vU}, 7, v0\nv_lshlrev_b32 v{vU}, 6, v{vU}\nv_add_u32 v{self.vPf}, s{S_G}, v{vU}")
        a(f"s_lshl_b32 s{sM0}, s{S_W}, 10")
    def warm(self): return f"buffer_load_dword v{self.vJ}, v{self.vPf}, {SX}, s{sSrc} offen"
    def dma(self, sFrom=None):
        out = []
        for i in range(16):
            if self.otype:
                g = (f"s_mov_b32 m0, s{sM0}\ns_mov_b32 s{sK}, s{sFrom or sSrc}" if i == 0 else f"s_add_u32 m0, m0, 4096\ns_add_u32 s{sK}, s{sK}, 4096")
                out.append((g, f"buffer_load_dwordx4 v{self.vSrc}, {WS}, s{sK} offen sc1 lds"))
            else:
                g = (f"s_mov_b32 m0, s{sM0}" if i == 0 else "s_add_u32 m0, m0, 3968")
                out.append((g, f"buffer_load_dwordx4 v{self.vSrc}, {SX}, s{sSrc} offen offset:{128*i} lds"))
        return out
    def dma_now(self):
        for g, l in self.dma(): self.a(g); self.a(l)
    def dma_hooks(self, sFrom=None):
        h = {}
        for i, (g, l) in enumerate(self.dma(sFrom)):
            h.setdefault(i * self.DS, []).append(g); h.setdefault(i * self.DS + 1, []).append(l)
        return h
    def ndma(self, t): return len([i for i in range(16) if i * self.DS + 1 <= t])
    def compute(self, ring, swap, hooks):
        a = self.a
        def rd(t):
            k, tt = t >> 1, t & 1
            v, off = (self.vRd[tt], k * 2048) if self.otype else (self.vRd[k & 1], (k >> 1) * 4096 + tt * 1024)
            a(f"ds_read_b128 v[{ring+4*(t%D)}:{ring+4*(t%D)+3}], v{v} offset:{off}")
        for t in range(D - 1): rd(t)
        for t in range(64):
            if t % 2 == 0: a(f"s_waitcnt lgkmcnt({min(D - 3, 62 - t)})")
            X = f"v[{ring+4*(t%D)}:{ring+4*(t%D)+3}]"
            for q in range(2):
                W = f"a[{8*(t>>1)+4*q}:{8*(t>>1)+4*q+3}]"
                d = self.acc + (8 * q + 4 * (t & 1) if swap else 8 * (t & 1) + 4 * q)
                a(f"v_mfma_f32_16x16x32_bf16 v[{d}:{d+3}], {X if swap else W}, {W if swap else X}, " + ("0" if t < 2 else f"v[{d}:{d+3}]"))
                if q == 0 and t + D - 1 < 64: rd(t + D - 1)
            for h in hooks.get(t, []): a(h)
    def toggle_read(self):
        for k in range(2): self.a(f"v_xor_b32 v{self.vRd[k]}, 0x10000, v{self.vRd[k]}")

def addh(h, t, s): h.setdefault(t, []).append(s)

def gen_kv(a, o):
    V = VAlloc(1); g = Gemm(a, V, False, o)
    ring = V(4 * D, 4); vP = V(8, 4); vSt = V(); vFl = V(); vVal = V(); vFy = V()
    a("L_kv:")
    a(f"s_and_b32 s{sT0}, s{S_X}, 1")
    a(f"s_lshl_b32 s{S_G}, s{S_J}, 7\ns_lshl_b32 s{S_G+1}, s{S_W}, 3\ns_add_u32 s{S_G}, s{S_G}, s{S_G+1}\ns_lshl_b32 s{S_G+1}, s{sT0}, 2\ns_add_u32 s{S_G}, s{S_G}, s{S_G+1}\ns_add_u32 s{S_G}, s{S_G}, {FL_KV}")
    lane1(a, vFl, S_G, g.vT)
    a(f"s_mul_i32 s{sT1}, s{sT0}, 28\ns_add_u32 s{sT1}, s{sT1}, s{S_J}\ns_lshl_b32 s{S_G}, s{sT1}, 2\ns_add_u32 s{S_G}, s{S_G}, {FL_Y + 256}")
    a(f"s_cmp_lt_u32 s{S_J}, 28\ns_cselect_b32 s{S_G}, s{S_G}, {OOB}")
    lane1(a, vFy, S_G, g.vT)
    a(f"v_mov_b32 v{vVal}, 0\nbuffer_store_dword v{vVal}, v{vFl}, {WS}, 0 offen sc1\nbuffer_store_dword v{vVal}, v{vFy}, {WS}, 0 offen sc1")
    a(f"s_lshl_b32 s{S_G}, s{S_J}, 13\ns_lshl_b32 s{S_G+1}, s{S_W}, 11\ns_add_u32 s{S_G}, s{S_G}, s{S_G+1}\ns_lshl_b32 s{S_G+1}, s{sT0}, 24\ns_add_u32 s{S_G}, s{S_G}, s{S_G+1}")
    assert WS_KX == 0 and WS_VX == 1 << 24
    g.granule(vSt)
    a(f"v_add_u32 v{vSt}, s{S_G}, v{vSt}")
    srd(a, S_T, P_X, 4 << 20)
    a(f"s_lshl_b32 s{sRow}, s{S_J}, 8\ns_lshl_b32 s{S_G}, s{S_W}, 6\ns_add_u32 s{sRow}, s{sRow}, s{S_G}")
    a(f"s_cmp_eq_u32 s{sT0}, 0\ns_cselect_b32 s{P_WQ}, s{P_WK}, s{P_WV}\ns_cselect_b32 s{P_WQ+1}, s{P_WK+1}, s{P_WV+1}")
    g.weights(P_WQ, 13, lambda: arrive(a))
    g.addrs()
    tl(a, 2); tl(a, 6, clk=True)
    a(f"s_mov_b32 s{sS}, 0\ns_mov_b32 s{sSrc}, 0\ns_barrier")
    g.dma_now()
    a("s_waitcnt vmcnt(0)")
    a(f"s_cmp_eq_u32 s{sT0}, 0\ns_cbranch_scc0 L_v_loop")
    for kv in range(2):
        nm = "kv"[kv]
        a(f"L_{nm}_loop:")
        a(f"s_xor_b32 s{sM0}, s{sM0}, 0x10000\ns_add_u32 s{sSrc}, s{sSrc}, 0x10000\nv_mov_b32 v{vVal}, s{sS}")
        a("s_waitcnt vmcnt(3)\ns_barrier")
        tl(a, 16, sS)
        FG = o.get('fg', 26)
        hooks = g.dma_hooks()
        addh(hooks, FG, f"s_waitcnt vmcnt({g.ndma(FG)})\nbuffer_store_dword v{vVal}, v{vFl}, {WS}, 0 offen sc1")
        addh(hooks, 50, g.warm())
        assert g.ndma(50) == 16
        g.compute(ring, kv == 1, hooks)
        g.toggle_read()
        a(f"s_lshl_b32 s{sK}, s{sS}, 18\ns_add_u32 s{sS}, s{sS}, 1")
        for i in range(8): cvt(a, vP + i, g.acc + 2 * i, g.acc + 2 * i + 1)
        for u in range(2): a(f"buffer_store_dwordx4 v[{vP+4*u}:{vP+4*u+3}], v{vSt}, {WS}, s{sK} offen offset:{128*u} sc1")
        a(f"s_cmp_lt_u32 s{sS}, 64\ns_cbranch_scc1 L_{nm}_loop")
        if kv == 0: a("s_branch L_kv_done")
    a("L_kv_done:")
    tl(a, 3); tl(a, 7, clk=True)
    a(f"v_mov_b32 v{vVal}, 64\ns_waitcnt vmcnt(0)\nbuffer_store_dword v{vVal}, v{vFl}, {WS}, 0 offen sc1")
    a(f"s_cmp_ge_u32 s{S_J}, 28\ns_cbranch_scc1 L_drain")
    if o.get('nomoe'): a("s_branch L_drain")
    else: gen_moe(a, o, V, vFy)

def gen_moe(a, o, V, vFy):
    vW = V(); vWd = V(); vTr = V(); vT = V(); vU = V(); vIdx = V(); vL16 = V(); vX = V(16, 4); acc = V(64, 4); vR = V(32, 4)
    PART = LDS_MISC
    WFL['f'] = 'nt' if o.get('nt', 0) & 16 else ''
    a("s_barrier")
    for b, p in enumerate((P_WG, P_WU, P_WD)): srd(a, S_B0 + 4 * b, p, 3584 * 1024 * 2)
    a(f"v_lshrrev_b32 v{vT}, 2, v0\nv_and_b32 v{vU}, 3, v0\nv_lshlrev_b32 v{vU}, 4, v{vU}\nv_mul_u32_u24 v{vW}, 7168, v{vT}\nv_add_u32 v{vW}, v{vW}, v{vU}\nv_lshl_add_u32 v{vWd}, v{vT}, 11, v{vU}")
    a(f"s_mul_i32 s{sRow}, s{S_W}, {256 * 7168}\ns_lshl_b32 s{S_G}, s{sT1}, 7\ns_add_u32 s{sRow}, s{sRow}, s{S_G}")
    a(f"s_lshl_b32 s{sT2}, s{sT1}, 17\ns_lshl_b32 s{S_G}, s{S_W}, 9\ns_add_u32 s{sT2}, s{sT2}, s{S_G}")
    a(f"v_lshrrev_b32 v{vT}, 5, v0\nv_lshlrev_b32 v{vT}, 4, v{vT}\nv_bfe_u32 v{vU}, v0, 3, 1\nv_lshl_add_u32 v{vT}, v{vU}, 3, v{vT}")
    a(f"v_mov_b32 v{vIdx}, 0x4444\nv_mul_u32_u24 v{vU}, 0xaaaa, v{vU}\nv_add_u32 v{vIdx}, v{vIdx}, v{vU}")
    a(f"v_bfe_u32 v{vU}, v0, 4, 1\nv_lshl_add_u32 v{vT}, v{vU}, 2, v{vT}\nv_bfe_u32 v{vU}, v0, 2, 1\nv_add_u32 v{vT}, v{vT}, v{vU}\nv_lshlrev_b32 v{vT}, 6, v{vT}")
    a(f"v_and_b32 v{vU}, 3, v0\nv_lshl_add_u32 v{vT}, v{vU}, 3, v{vT}\ns_lshl_b32 s{S_G}, s{S_W}, 15\nv_add_u32 v{vTr}, s{S_G}, v{vT}")
    a(f"v_lshlrev_b32 v{vL16}, 4, v0\nv_add_u32 v{vL16}, {PART}, v{vL16}")
    def tr(ch):
        return [(ch * 32 + (tt * 2 + tile) * 8 + 2 * p, vTr, (64 * tt + 32 * (p >> 1) + 2 * (p & 1)) * 64 + tile * 32)
                for tt in range(2) for tile in range(2) for p in range(4)]
    src = lambda ch: (S_B0 + 4 * (ch // 4), vW, sRow, [((ch % 2) * 128 + 16 * i) * 7168 + ((ch // 2) % 2) * 64 for i in range(8)])
    srcd = lambda ch: (S_B0 + 8, vWd, sT2, [(16 * (i % 4)) * 2048 + (2 * ch + i // 4) * 64 for i in range(8)])
    load_weights(a, 8, src, tr, tail_issue=lambda slot: dma_chunk(a, slot, srcd(slot), 'add'), op='add')
    wait_all_arrived(a)
    a(f"v_and_b32 v{vT}, 7, v0\nv_lshlrev_b32 v{vT}, 2, v{vT}\nv_add_u32 v{vT}, {FL_Y + 128}, v{vT}")
    poll(a, vT, vU, 0)
    a(f"v_not_b32 v{vU}, v{vU}\nv_and_b32 v{vU}, 0x7ff, v{vU}\nv_lshlrev_b32 v{vU}, 11, v{vU}\nv_lshrrev_b32 v{vT}, 3, v0\nv_lshl_add_u32 v{vU}, v{vT}, 4, v{vU}\ns_lshl_b32 s{S_G}, s{S_W}, 9")
    for t in range(4): a(f"buffer_load_dwordx4 v[{vX+4*t}:{vX+4*t+3}], v{vU}, {SX}, s{S_G} offen offset:{128*t}")
    for i in range(64): a(f"v_mov_b32 v{acc+i}, 0")
    a("s_waitcnt vmcnt(0)")
    for t in range(4):
        for T in range(8):
            w = (T >> 1) * 64 + (t * 2 + (T & 1)) * 8
            a(f"v_smfmac_f32_16x16x64_bf16 v[{acc+4*T}:{acc+4*T+3}], v[{vX+4*t}:{vX+4*t+3}], a[{w}:{w+7}], v{vIdx}")
    a(f"s_lshl_b32 s{S_G}, s{S_W}, 13\nv_add_u32 v{vT}, s{S_G}, v{vL16}")
    for T in range(8): a(f"ds_write_b128 v{vT}, v[{acc+4*T}:{acc+4*T+3}] offset:{1024*T}")
    load_weights(a, 4, None, tr, preissued=True)
    a("s_barrier")
    a(f"s_lshl_b32 s{S_G}, s{S_W}, 10\nv_add_u32 v{vT}, s{S_G}, v{vL16}")
    for ww in range(4):
        for k in range(2): a(f"ds_read_b128 v[{vR+8*ww+4*k}:{vR+8*ww+4*k+3}], v{vT} offset:{8192*ww + 4096*k}")
    a("s_waitcnt lgkmcnt(0)\ns_barrier")
    for i in range(0, 8, 2):
        pk(a, 'add', vR + i, vR + i, vR + 8 + i); pk(a, 'add', vR + 16 + i, vR + 16 + i, vR + 24 + i); pk(a, 'add', vR + i, vR + i, vR + 16 + i)
    for i in range(8): a(f"v_mov_b32 v{vR+8+i}, v{vR+i}")
    for i in range(8): a(f"v_permlane32_swap_b32 v{vR+i}, v{vR+8+i}")
    for i in range(0, 8, 2): pk(a, 'add', vR + i, vR + i, vR + 8 + i)
    for i in range(4): a(f"v_mul_f32 v{vR+8+i}, {hex(f32bits(-LOG2E))}, v{vR+i}")
    for i in range(4): a(f"v_exp_f32 v{vR+8+i}, v{vR+8+i}")
    for i in range(4): a(f"v_add_f32 v{vR+8+i}, 1.0, v{vR+8+i}")
    for i in range(4): a(f"v_rcp_f32 v{vR+8+i}, v{vR+8+i}")
    for i in range(4): a(f"v_mul_f32 v{vR+i}, v{vR+i}, v{vR+8+i}")
    for i in range(4): a(f"v_mul_f32 v{vR+i}, v{vR+i}, v{vR+4+i}")
    for i in range(4): cvt(a, vR + i, vR + i, vR + i)
    a(f"v_bfe_u32 v{vT}, v0, 4, 1\nv_lshlrev_b32 v{vT}, 9, v{vT}\nv_and_b32 v{vU}, 15, v0\nv_lshl_add_u32 v{vT}, v{vU}, 1, v{vT}\ns_lshl_b32 s{S_G}, s{S_W}, 5\ns_add_u32 s{S_G}, s{S_G}, {PART}\nv_add_u32 v{vT}, s{S_G}, v{vT}")
    for i in range(4): a(f"ds_write_b16 v{vT}, v{vR+i} offset:{128*i}")
    a(f"v_and_b32 v{vT}, 7, v0\nv_lshlrev_b32 v{vT}, 7, v{vT}\nv_lshrrev_b32 v{vU}, 3, v0\nv_lshl_add_u32 v{vT}, v{vU}, 4, v{vT}\nv_add_u32 v{vT}, {PART}, v{vT}")
    for i in range(64): a(f"v_mov_b32 v{acc+i}, 0")
    a("s_waitcnt lgkmcnt(0)\ns_barrier")
    a(f"ds_read_b128 v[{vX}:{vX+3}], v{vT}\ns_waitcnt lgkmcnt(0)")
    for T in range(16): a(f"v_smfmac_f32_16x16x64_bf16 v[{acc+4*T}:{acc+4*T+3}], v[{vX}:{vX+3}], a[{8*T}:{8*T+7}], v{vIdx}")
    a(f"v_lshrrev_b32 v{vT}, 5, v0\nv_and_b32 v{vU}, 15, v0\nv_lshl_add_u32 v{vT}, v{vT}, 4, v{vU}\nv_lshlrev_b32 v{vT}, 5, v{vT}\nv_bfe_u32 v{vU}, v0, 4, 1\nv_lshl_add_u32 v{vT}, v{vU}, 4, v{vT}")
    a(f"s_lshl_b32 s{sK}, s{sT1}, 15\ns_lshl_b32 s{S_G}, s{S_W}, 13\ns_add_u32 s{sK}, s{sK}, s{S_G}\ns_add_u32 s{sK}, s{sK}, {WS_YP}")
    for P in range(8):
        b = acc + 8 * P
        for i in range(4): a(f"v_permlane32_swap_b32 v{b+i}, v{b+4+i}")
        for i in (0, 2): pk(a, 'add', b + i, b + i, b + 4 + i)
        if P == 4: a(f"s_add_u32 s{sK}, s{sK}, 4096")
        a(f"buffer_store_dwordx4 v[{b}:{b+3}], v{vT}, {WS}, s{sK} offen offset:{1024*(P%4)} sc1")
    a(f"v_mov_b32 v{vU}, 1\ns_waitcnt vmcnt(0)\ns_barrier")
    a(f"s_cmp_lg_u32 s{S_W}, 0\ns_cbranch_scc1 L_drain")
    a(f"buffer_store_dword v{vU}, v{vFy}, {WS}, 0 offen sc1")
    a("s_branch L_drain")

def gen_q(a, o):
    V = VAlloc(1); g = Gemm(a, V, False, o)
    vQw = V(); vQr = V(); vL = V(); vKmA = V(); vVmA = V(); vF = V(); vFd = V(); vFo = V(); vFc = V(); vFv = V()
    vT = V(2, 2); vM = V(2, 2); vC = V(2, 2)
    vQ = V(32, 4); vK = V(32, 4); vV = V(32, 4); vKm = V(32, 4); vB = V(16, 4); vVm = V(16, 4); vPf = V(12, 4); ring = V(32, 4)
    vSx = g.acc; vSm = ring; vO2 = ring + 16; vP = vK
    sPre, sA0, sA1, sA2, sA3, sA4 = range(sKey, sKey + 6)
    QB = LDS_MISC
    a("L_q:")
    a(f"s_lshr_b32 s{S_G}, s{S_J}, 3\ns_lshl_b32 s{S_G}, s{S_G}, 7\ns_and_b32 s{S_G+1}, s{S_J}, 7\ns_lshl_b32 s{S_G+1}, s{S_G+1}, 4\ns_add_u32 s{S_G}, s{S_G}, s{S_G+1}")
    a(f"s_lshl_b32 s{S_G+1}, s{S_W}, 2\ns_add_u32 s{S_G}, s{S_G}, s{S_G+1}\ns_add_u32 s{S_G}, s{S_G}, {FL_O}")
    lane1(a, vFo, S_G, vFc)
    a(f"v_mov_b32 v{vFv}, 0\nv_mov_b32 v{vFd}, 0\nbuffer_store_dword v{vFv}, v{vFo}, {WS}, 0 offen sc1")
    a(f"s_lshl_b32 s{S_G}, s{S_J}, 7\ns_add_u32 s{S_G}, s{S_G}, {FL_KV}\nv_and_b32 v{vF}, 7, v0\nv_and_b32 v{vT}, 3, v0\nv_add_u32 v{vT}, {(FL_M - FL_KV) // 4}, v{vT}")
    a(f"v_cmp_gt_u32 vcc, 32, v0\nv_cndmask_b32 v{vF}, v{vT}, v{vF}, vcc\nv_lshlrev_b32 v{vF}, 2, v{vF}\nv_add_u32 v{vF}, s{S_G}, v{vF}")
    a(f"v_lshlrev_b32 v{vT}, 4, v0\ns_lshl_b32 s{S_G}, s{S_J}, 13\nv_add_u32 v{vL}, s{S_G}, v{vT}")
    a(f"s_lshl_b32 s{S_G}, s{S_W}, 13\ns_add_u32 s{S_G}, s{S_G}, {QB}\nv_add_u32 v{vQr}, s{S_G}, v{vT}")
    g.granule(vQw)
    a(f"s_lshl_b32 s{S_G}, s{S_W}, 11\ns_add_u32 s{S_G}, s{S_G}, {QB}\nv_add_u32 v{vQw}, s{S_G}, v{vQw}")
    a(f"s_lshl_b32 s{S_G}, s{S_J}, 12\ns_add_u32 s{S_G}, s{S_G}, {WS_KVM}\nv_lshrrev_b32 v{vT}, 5, v0")
    a(f"v_and_b32 v{vKmA}, 7, v0\nv_lshlrev_b32 v{vKmA}, 4, v{vKmA}\nv_lshl_add_u32 v{vKmA}, v{vT}, 7, v{vKmA}\nv_add_u32 v{vKmA}, s{S_G}, v{vKmA}")
    a(f"v_and_b32 v{vVmA}, 31, v0\nv_lshlrev_b32 v{vVmA}, 4, v{vVmA}\nv_lshl_add_u32 v{vVmA}, v{vT}, 3, v{vVmA}\nv_add_u32 v{vVmA}, s{S_G}, v{vVmA}")
    a(f"v_and_b32 v{vT+1}, 31, v0\nv_lshlrev_b32 v{vT}, 2, v{vT}\nv_sub_u32 v{vT}, v{vT+1}, v{vT}\nv_mov_b32 v{vT+1}, {hex(f32bits(-1e30))}")
    for r in range(16):
        a(f"v_cmp_gt_i32 vcc, {8*(r>>2) + (r&3)}, v{vT}\nv_cndmask_b32 v{vB+r}, 0, v{vT+1}, vcc")
    for c in range(4): a(f"v_mov_b32 v{vVm+4*c+2}, 0\nv_mov_b32 v{vVm+4*c+3}, 0")
    a(f"v_mov_b32 v{vPf+10}, 0\nv_mov_b32 v{vPf+11}, 0")
    sc = hex(f32bits(128 ** -0.5 * LOG2E))
    a(f"v_mov_b32 v{vC}, {sc}\nv_mov_b32 v{vC+1}, {sc}")
    srd(a, S_T, P_X, 4 << 20)
    a(f"s_lshl_b32 s{sRow}, s{S_J}, 8\ns_lshl_b32 s{S_G}, s{S_W}, 6\ns_add_u32 s{sRow}, s{sRow}, s{S_G}")
    g.weights(P_WQ, 13, lambda: arrive(a))
    g.addrs()
    tl(a, 2)
    a(f"s_mov_b32 s{sS}, 0\ns_mov_b32 s{sSrc}, 0\ns_barrier")
    g.dma_now()
    wait_all_arrived(a)
    a(f"s_sub_u32 s{sT0}, s{S_W}, 4")
    ldK = [f"buffer_load_dwordx4 v[{vK+4*k}:{vK+4*k+3}], v{vL}, {WS}, s{sA0 if k < 4 else sA1} offen offset:{1024*(k%4)} sc1" for k in range(8)]
    ldV = [f"buffer_load_dwordx4 v[{vV+4*k}:{vV+4*k+3}], v{vL}, {WS}, s{sA2 if k < 4 else sA3} offen offset:{1024*(k%4)} sc1" for k in range(8)]
    ldM = [f"buffer_load_dwordx4 v[{vKm+4*k}:{vKm+4*k+3}], v{vKmA}, {WS}, s{sA4} offen offset:{1024*(k>>1) + 256*(k&1)} sc1" for k in range(8)]
    ldM += [f"buffer_load_dwordx2 v[{vVm+4*c}:{vVm+4*c+1}], v{vVmA}, {WS}, s{sA4} offen offset:{1024*c + 512} sc1" for c in range(4)]
    def offs(base):
        a(f"s_lshl_b32 s{sA4}, s{sT0}, 17\ns_lshl_b32 s{sA0}, s{sT0}, 18")
        if base: a(f"s_or_b32 s{sA4}, s{sA4}, s{base}\ns_or_b32 s{sA0}, s{sA0}, s{base}")
        a(f"s_add_u32 s{sA1}, s{sA0}, 4096\ns_add_u32 s{sA2}, s{sA0}, {WS_VX}\ns_add_u32 s{sA3}, s{sA1}, {WS_VX}")
    def epilogue():
        g.toggle_read()
        a(f"s_and_b32 s{sK}, s{sS}, 3\ns_lshl_b32 s{S_G}, s{sK}, 13\nv_add_u32 v{vT}, s{S_G}, v{vQw}\ns_add_u32 s{sS}, s{sS}, 1")
        for i in range(8): cvt(a, ring + i, g.acc + 2 * i, g.acc + 2 * i + 1)
        for u in range(2): a(f"ds_write_b128 v{vT}, v[{ring+4*u}:{ring+4*u+3}] offset:{128*u}")
        a("s_waitcnt lgkmcnt(0)")
    a("L_q_loop:")
    a("s_waitcnt vmcnt(1)")
    a("L_q_loop2:")
    a(f"s_xor_b32 s{sM0}, s{sM0}, 0x10000\ns_add_u32 s{sSrc}, s{sSrc}, 0x10000\ns_and_b32 s{sK}, s{sS}, 3\ns_barrier")
    tl(a, 16, sS)
    a(f"s_cmp_eq_u32 s{sK}, 3\ns_cbranch_scc1 L_q_last")
    hooks = g.dma_hooks()
    addh(hooks, 30, f"s_waitcnt vmcnt({g.ndma(30)})\nbuffer_store_dword v{vFv}, v{vFc}, {WS}, 0 offen sc1\nv_mov_b32 v{vFc}, {OOB}")
    addh(hooks, 48, f"buffer_load_dword v{vFd}, v{vF}, {WS}, 0 offen sc1")
    addh(hooks, 50, g.warm())
    g.compute(ring, False, hooks)
    epilogue()
    a("s_branch L_q_loop")
    a("L_q_last:")
    a(f"v_cmp_ge_u32 vcc, s{sT0}, v{vFd}\ns_cmp_eq_u64 vcc, 0\ns_cselect_b32 s{sPre}, 0, {OOB}")
    offs(sPre)
    hooks = g.dma_hooks()
    for i, l in enumerate(ldK + ldV + ldM): addh(hooks, 2 * i + (2 if (2 * i) % 3 == 1 else 2), l)
    addh(hooks, 60, g.warm())
    g.compute(ring, False, hooks)
    epilogue()
    a("s_barrier")
    a(f"s_cmp_lt_i32 s{sT0}, 0\ns_cbranch_scc1 L_q_next")
    a(f"s_cmp_lg_u32 s{sPre}, 0\ns_cbranch_scc1 L_q_block")
    a("s_waitcnt vmcnt(1)")
    def sx(wait):
        for k in range(8):
            if wait: a(f"s_waitcnt vmcnt({15-k})")
            m32(a, vSx, f"v[{vK+4*k}:{vK+4*k+3}]", f"v[{vQ+4*k}:{vQ+4*k+3}]", f"v[{vB}:{vB+15}]" if k == 0 else f"v[{vSx}:{vSx+15}]")
    sx(False)
    a("s_branch L_q_att")
    a("L_q_block:")
    offs(None)
    a("s_mov_b32 exec_hi, 0")
    poll(a, vF, vFd, f"s{sT0}")
    a("s_mov_b64 exec, -1")
    for l in ldK + ldV: a(l)
    sx(True)
    poll(a, vF, vFd, f"s{sT0}", sleep=1)
    for l in ldM: a(l)
    a("s_waitcnt vmcnt(4)")
    a("L_q_att:")
    tl(a, 96, sT0)
    for k in range(8):
        m32(a, vSm, f"v[{vKm+4*k}:{vKm+4*k+3}]", f"v[{vQ+4*k}:{vQ+4*k+3}]", "0" if k == 0 else f"v[{vSm}:{vSm+15}]")
        if k == 2:
            a(f"v_max3_f32 v{vM}, v{vSx}, v{vSx+1}, v{vSx+2}")
            for r in range(3, 11, 2): a(f"v_max3_f32 v{vM}, v{vM}, v{vSx+r}, v{vSx+r+1}")
        if k == 3:
            for r in range(11, 15, 2): a(f"v_max3_f32 v{vM}, v{vM}, v{vSx+r}, v{vSx+r+1}")
            a(f"v_max_f32 v{vM}, v{vM}, v{vSx+15}")
            a(f"s_add_u32 s{sA2}, s{sA2}, {WS_O - WS_VX}\ns_add_u32 s{sA3}, s{sA3}, {WS_O - WS_VX}")
    a(f"v_max3_f32 v{vM}, v{vM}, v{vSm}, v{vSm+1}\nv_max3_f32 v{vM}, v{vM}, v{vSm+2}, v{vSm+3}")
    a(f"v_mov_b32 v{vT}, v{vM}\nv_permlane32_swap_b32 v{vM}, v{vT}\nv_max_f32 v{vM}, v{vM}, v{vT}\nv_mul_f32 v{vM}, v{vM}, v{vC}")
    regs = [vSx + i for i in range(0, 16, 2)] + [vSm, vSm + 2]
    for r in regs: a(f"v_pk_fma_f32 v[{r}:{r+1}], v[{r}:{r+1}], v[{vC}:{vC+1}], v[{vM}:{vM+1}] op_sel_hi:[1,1,0] neg_lo:[0,0,1] neg_hi:[0,0,1]")
    for r in regs: a(f"v_exp_f32 v{r}, v{r}\nv_exp_f32 v{r+1}, v{r+1}")
    for i, r in enumerate(regs): cvt(a, vPf + i, r, r + 1)
    a("s_waitcnt vmcnt(0)")
    def pv(c):
        d = (vO2, vKm)[c & 1]
        m32(a, d, f"v[{vV+8*c}:{vV+8*c+3}]", f"v[{vPf}:{vPf+3}]", "0")
        if c == 0:
            pk(a, 'add', vM, regs[0], regs[1])
            for r in regs[2:6]: pk(a, 'add', vM, vM, r)
        if c == 1: a(f"v_rcp_f32 v{vM}, v{vM}")
        m32(a, d, f"v[{vV+8*c+4}:{vV+8*c+7}]", f"v[{vPf+4}:{vPf+7}]", f"v[{d}:{d+15}]")
        if c == 0:
            for r in regs[6:]: pk(a, 'add', vM, vM, r)
            a(f"v_add_f32 v{vM}, v{vM}, v{vM+1}")
        m32(a, d, f"v[{vVm+4*c}:{vVm+4*c+3}]", f"v[{vPf+8}:{vPf+11}]", f"v[{d}:{d+15}]")
        if c == 0: a(f"v_mov_b32 v{vT}, v{vM}\nv_permlane32_swap_b32 v{vM}, v{vT}\nv_add_f32 v{vM}, v{vM}, v{vT}")
    def fin(c):
        d = (vO2, vKm)[c & 1]; p = vP + 8 * c
        for i in range(0, 16, 2): pk(a, 'mul', d + i, d + i, vM, "op_sel_hi:[1,0]")
        for i in range(8): cvt(a, p + i, d + 2 * i, d + 2 * i + 1)
        for u in range(2):
            k = 2 * c + u
            a(f"buffer_store_dwordx4 v[{p+4*u}:{p+4*u+3}], v{vL}, {WS}, s{sA2 if k < 4 else sA3} offen offset:{1024*(k%4)} sc1")
    pv(0); pv(1); fin(0); pv(2); fin(1); pv(3); fin(2); fin(3)
    a(f"v_add_u32 v{vFv}, 1, v{vFv}\nv_mov_b32 v{vFc}, v{vFo}")
    tl(a, 160, sT0)
    a(f"s_cmp_lt_u32 s{sS}, 64\ns_cbranch_scc1 L_q_next2")
    a(f"s_waitcnt vmcnt(0)\nbuffer_store_dword v{vFv}, v{vFo}, {WS}, 0 offen sc1")
    a(f"s_cmp_ge_u32 s{sT0}, 60\ns_cbranch_scc1 L_drain")
    a("L_q_next:")
    a("s_waitcnt vmcnt(1)")
    a("L_q_next2:")
    for k in range(8): a(f"ds_read_b128 v[{vQ+4*k}:{vQ+4*k+3}], v{vQr} offset:{1024*k}")
    a(f"s_add_u32 s{sT0}, s{sT0}, 4\ns_waitcnt lgkmcnt(0)")
    a(f"s_cmp_lt_u32 s{sS}, 64\ns_cbranch_scc1 L_q_loop2\ns_branch L_q_block")

def gen_o(a, o):
    V = VAlloc(1); g = Gemm(a, V, True, o)
    vT = V(2, 2); vU = V(2, 2); vFo = V(); vFv = V(); vPs = V(); vPl = [V(), V(), V()]; vXo = V(); vGo = V(); vTok = V(); vSa = V()
    vSv = V(2, 2); vY = V(2, 2); vX = V(2, 2); vG = V(2, 2); fX = V(4, 4); fG = V(2, 2); fA = V(4, 4); vR = V(12, 4); ring = V(4 * D, 4); big = V(128, 4)
    SO = f"s[{S_B0+4}:{S_B0+7}]"; SAVE = LDS_MISC
    sKq, sPend, sTag, sSl, sCol, sFs, sDef, sFrom = range(sKey + 8, sKey + 16)
    a("L_o:")
    a(f"s_lshr_b32 s{sKq}, s{S_J}, 3\ns_and_b32 s{sT0}, s{S_J}, 7")
    a(f"s_lshl_b32 s{S_G}, s{sT0}, 16\ns_lshl_b32 s{S_G+1}, s{S_W}, 14\ns_add_u32 s{S_G}, s{S_G}, s{S_G+1}\ns_lshl_b32 s{S_G+1}, s{sKq}, 12\ns_add_u32 s{S_G}, s{S_G}, s{S_G+1}\ns_add_u32 s{S_G}, s{S_G}, {WS_RP}")
    a(f"v_lshlrev_b32 v{vPs}, 4, v0\nv_add_u32 v{vPs}, s{S_G}, v{vPs}")
    for r in range(1, 4): a(f"v_xor_b32 v{vPl[r-1]}, {4096*r}, v{vPs}")
    for i in range(4): a(f"v_mov_b32 v{vR+i}, -1")
    a(f"s_mov_b32 s{S_G}, 0x80000")
    for r in range(1, 4):
        a(f"buffer_store_dwordx4 v[{vR}:{vR+3}], v{vPs}, {WS}, 0 offen offset:{1024*r}\nbuffer_store_dwordx4 v[{vR}:{vR+3}], v{vPs}, {WS}, s{S_G} offen offset:{1024*r}")
    a(f"s_lshl_b32 s{S_G}, s{S_J}, 2\ns_add_u32 s{S_G}, s{S_G}, {FL_Y}")
    lane1(a, vFv, S_G, vT)
    a(f"v_mov_b32 v{vU}, 0\nbuffer_store_dword v{vU}, v{vFv}, {WS}, 0 offen sc1")
    a(f"v_and_b32 v{vY}, 7, v0\nv_lshlrev_b32 v{vY}, 2, v{vY}\nv_add_u32 v{vY}, {FL_Y + 128}, v{vY}")
    l = a.label('kz')
    a(f"s_cmp_lg_u32 s{S_J}, 0\ns_cbranch_scc1 {l}\nbuffer_store_dword v{vU}, v{vY}, {WS}, 0 offen sc1\n{l}:")
    a("s_waitcnt vmcnt(0)")
    arrive(a)
    srd(a, S_T, P_X, 4 << 20); srd(a, S_B0 + 4, P_WR, 2048); srd(a, S_B0 + 8, P_GW, 2048)
    a(f"v_and_b32 v{vT}, 15, v0\nv_lshrrev_b32 v{vU}, 4, v0\nv_lshlrev_b32 v{vU}, 4, v{vU}\nv_lshl_add_u32 v{vT}, v{vT}, 11, v{vU}")
    a(f"s_lshl_b32 s{sK}, s{S_J}, 17\ns_lshl_b32 s{S_G}, s{S_W}, 15\ns_add_u32 s{sK}, s{sK}, s{S_G}")
    a(f"s_mov_b32 s{sT1}, 0xaaaaaaaa\ns_mov_b32 s{sT2}, 0xaaaaaaaa")
    assert sT1 % 2 == 0
    for t in range(32): a(f"buffer_load_dwordx4 a[{4*t}:{4*t+3}], v{vT}, {SX}, s{sK} offen offset:{64*t}")
    for half in range(2):
        if half: a("s_waitcnt vmcnt(31)")
        a(f"s_not_b64 exec, s[{sT1}:{sT2}]")
        for t in range(16): a(f"buffer_load_dwordx4 v[{big+64*half+4*t}:{big+64*half+3+4*t}], v{vU}, s[{S_B0+4}:{S_B0+7}], 0 offen offset:{1024*half + 64*t}")
        if not half: a("s_waitcnt vmcnt(47)")
        a(f"s_mov_b64 exec, s[{sT1}:{sT2}]")
        for t in range(16): a(f"buffer_load_dwordx4 v[{big+64*half+4*t}:{big+64*half+3+4*t}], v{vU}, s[{S_B0+8}:{S_B0+11}], 0 offen offset:{1024*half + 64*t}")
    a("s_mov_b64 exec, -1\ns_waitcnt vmcnt(0)")
    for t in range(32):
        a(f"v_mfma_f32_16x16x32_bf16 v[{vR}:{vR+3}], a[{4*t}:{4*t+3}], v[{big+4*t}:{big+3+4*t}], " + ("0" if t == 0 else f"v[{vR}:{vR+3}]"))
    a(f"v_and_b32 v{vT}, 15, v0\nv_lshl_add_u32 v{vU}, v{vT}, 13, v{vU}\nv_cmp_gt_u32 vcc, 2, v{vT}\nv_mov_b32 v{vT}, {OOB}\nv_cndmask_b32 v{vU}, v{vT}, v{vU}, vcc")
    a(f"s_lshr_b32 s{sK}, s{sK}, 9\ns_add_u32 s{sK}, s{sK}, {WS_RG}")
    a(f"buffer_store_dwordx4 v[{vR}:{vR+3}], v{vU}, {WS}, s{sK} offen sc1")
    tl(a, 5)
    a(f"s_lshl_b32 s{sCol}, s{sT0}, 8\ns_lshl_b32 s{S_G}, s{S_W}, 6\ns_add_u32 s{sCol}, s{sCol}, s{S_G}\ns_lshl_b32 s{sRow}, s{sKq}, 21\ns_add_u32 s{sRow}, s{sRow}, s{sCol}")
    a(f"s_and_b32 s{sT1}, s{sKq}, 1\ns_lshl_b32 s{sT1}, s{sT1}, 5\ns_add_u32 s{sCol}, s{sCol}, s{sT1}")
    def rgflag():
        l = a.label('rf')
        a(f"s_barrier\nv_mov_b32 v{vT}, 1\ns_cmp_lg_u32 s{S_W}, 0\ns_cbranch_scc1 {l}\nbuffer_store_dword v{vT}, v{vFv}, {WS}, 0 offen sc1\n{l}:")
    g.weights(P_WO, 11, rgflag, sKq)
    g.addrs(sKq)
    tl(a, 2)
    wait_all_arrived(a)
    l = a.label('t8')
    a(f"s_or_b32 s{S_G}, s{S_J}, s{S_W}\ns_cbranch_scc1 {l}")
    a(f"v_and_b32 v{vT}, 31, v0\nv_lshlrev_b32 v{vT}, 2, v{vT}\nv_add_u32 v{vT}, {FL_Y}, v{vT}")
    poll(a, vT, vU, 0)
    a(f"v_lshlrev_b32 v{vT}, 4, v0\ns_mov_b32 s{sK}, {WS_RG}\ns_mov_b32 s{sT1}, {WS_RG + 4096}")
    for k in range(8): a(f"buffer_load_dwordx4 v[{big+4*k}:{big+4*k+3}], v{vT}, {WS}, s{sK if k < 4 else sT1} offen offset:{1024*(k%4)} sc1")
    a(f"v_lshlrev_b32 v{vT}, 2, v0\nv_sub_u32 v{vT}, 0xfff, v{vT}\ns_waitcnt vmcnt(0)")
    for i in range(32):
        r = big + i
        a(f"v_cvt_pk_bf16_f32 v{r}, 0, v{r}\nv_ashrrev_i32 v{vU}, 31, v{r}\nv_or_b32 v{vU}, 0x80000000, v{vU}\nv_xor_b32 v{r}, v{r}, v{vU}\nv_and_b32 v{r}, 0xffff0000, v{r}")
        a(f"v_subrev_u32 v{vU}, {256*(i>>2) + (i&3)}, v{vT}\nv_or_b32 v{r}, v{r}, v{vU}")
    a(f"s_mov_b32 s{sK}, 0\ns_mov_b32 s{sT1}, 0\nv_mov_b32 v{vX}, 0")
    lt = a.label('tk')
    a(f"{lt}:")
    a(f"v_max3_u32 v{vU}, v{big}, v{big+1}, v{big+2}")
    for i in range(3, 31, 2): a(f"v_max3_u32 v{vU}, v{vU}, v{big+i}, v{big+i+1}")
    a(f"v_max_u32 v{vU}, v{vU}, v{big+31}")
    for sh in (1, 2, 4, 8): a(f"v_max_u32_dpp v{vU}, v{vU}, v{vU} row_ror:{sh} row_mask:0xf bank_mask:0xf")
    for op in ("16", "32"): a(f"v_mov_b32 v{vT}, v{vU}\nv_permlane{op}_swap_b32 v{vU}, v{vT}\nv_max_u32 v{vU}, v{vU}, v{vT}")
    a(f"v_readfirstlane_b32 s{sT2}, v{vU}")
    for i in range(32): a(f"v_sub_u32 v{big+i}, v{big+i}, v{vU}")
    a(f"s_add_u32 s{sT1}, s{sT1}, s{sT2}\ns_mov_b32 m0, s{sK}\nv_writelane_b32 v{vX}, s{sT1}, m0")
    a(f"s_add_u32 s{sK}, s{sK}, 1\ns_cmp_lt_u32 s{sK}, 8\ns_cbranch_scc1 {lt}")
    a(f"s_mov_b64 exec, 0xff\nbuffer_store_dword v{vX}, v{vY}, {WS}, 0 offen sc1\ns_mov_b64 exec, -1")
    a(f"{l}:")
    poll(a, vY, vU, 0)
    a(f"v_not_b32 v{vU}, v{vU}\nv_and_b32 v{vU}, 0x7ff, v{vU}")
    for k in range(8): a(f"v_readlane_b32 s{sKey+k}, v{vU}, {k}")
    a(f"v_and_b32 v{vT}, 3, v0\nv_lshlrev_b32 v{vT}, 3, v{vT}\nv_add_u32 v{vT}, {FL_Y + 128}, v{vT}\nbuffer_load_dwordx2 v[{vSv}:{vSv+1}], v{vT}, {WS}, 0 offen sc1")
    srd(a, S_B0 + 4, P_OUT, 4 << 20)
    a(f"s_lshr_b32 s{S_G}, s{sKq}, 1\ns_lshl_b32 s{S_G}, s{S_G}, 4\nv_and_b32 v{vTok}, 15, v0\nv_add_u32 v{vTok}, s{S_G}, v{vTok}")
    a(f"v_lshrrev_b32 v{vU}, 4, v0\nv_lshlrev_b32 v{vXo}, 11, v{vTok}\nv_lshl_add_u32 v{vXo}, v{vU}, 3, v{vXo}\nv_add_u32 v{vXo}, s{sCol}, v{vXo}")
    a(f"v_lshlrev_b32 v{vGo}, 2, v{vTok}\nv_add_u32 v{vGo}, {WS_RG + 8192}, v{vGo}")
    a(f"s_lshl_b32 s{S_G}, s{S_W}, 10\ns_add_u32 s{S_G}, s{S_G}, {SAVE}\nv_lshlrev_b32 v{vSa}, 4, v{vU}\nv_add_u32 v{vSa}, s{S_G}, v{vSa}")
    a(f"s_lshl_b32 s{S_G}, s{sKq}, 7\ns_add_u32 s{S_G}, s{S_G}, {FL_O}\nv_and_b32 v{vFo}, 31, v0\nv_lshlrev_b32 v{vFo}, 2, v{vFo}\nv_add_u32 v{vFo}, s{S_G}, v{vFo}")
    a(f"s_lshl_b32 s{sSrc}, s{sKq}, 16\ns_add_u32 s{sSrc}, s{sSrc}, {WS_O}\ns_mov_b32 s{sS}, 0\ns_mov_b32 s{sSl}, 0\ns_barrier")
    def avail(sSeg, vD):
        a(f"v_lshlrev_b32 v{vT}, 2, v{vD}\nv_and_or_b32 v{vT}, v0, 3, v{vT}\nv_subrev_u32 v{vT}, s{sSeg}, v{vT}\nv_and_b32 v{vU}, 3, v{vT}")
        a(f"v_cmp_gt_i32 vcc, 4, v{vT}\nv_cmp_eq_u32 s[{sT1}:{sT2}], 0, v{vU}\ns_and_b64 vcc, vcc, s[{sT1}:{sT2}]")
    ldP = "\n".join(f"buffer_load_dwordx4 v[{vR+4*r-4}:{vR+4*r-1}], v{vPl[r-1]}, {WS}, s{sSl} offen offset:{1024*r} sc1" for r in range(1, 4))
    ldF = f"buffer_load_dword v{vFv}, v{vFo}, {WS}, 0 offen sc1"
    a("L_o_fetch:")
    a(f"{ldF}\ns_waitcnt vmcnt(0)")
    avail(sS, vFv)
    l = a.label('of')
    a(f"s_cbranch_scc0 {l}\ns_sleep 1\ns_sub_u32 s{S_BUD}, s{S_BUD}, 1\ns_cbranch_scc0 L_o_fetch\ns_branch L_abort\n{l}:")
    g.dma_now()
    a(f"{ldF}\ns_mov_b32 s{sDef}, 0\ns_waitcnt vmcnt(0)")
    a("L_o_loop:")
    a(f"s_xor_b32 s{sM0}, s{sM0}, 0x10000\ns_add_u32 s{sSrc}, s{sSrc}, 0x40000\ns_add_u32 s{sT0}, s{sS}, 1")
    avail(sT0, vFv)
    a(f"s_cselect_b32 s{sPend}, 1, 0\ns_cselect_b32 s{sFrom}, {OOB}, s{sSrc}")
    a(f"s_lshl_b32 s{S_G+1}, s{sS}, 16\ns_lshl_b32 s{S_G}, s{sS}, 7")
    a(f"buffer_load_dwordx2 v[{vX}:{vX+1}], v{vXo}, {SX}, s{S_G+1} offen\nbuffer_load_dword v{vG}, v{vGo}, {WS}, s{S_G} offen sc1")
    a("s_barrier")
    tl(a, 16, sS)
    hooks = g.dma_hooks(sFrom)
    addh(hooks, 48, ldF)
    for i, l in enumerate(ldP.split("\n")): addh(hooks, 50 + 2 * i, l)
    g.compute(ring, False, hooks)
    g.toggle_read()
    acc = g.acc
    a(f"s_waitcnt vmcnt(0)\ns_cmp_eq_u32 s{sDef}, 0\ns_cbranch_scc1 L_o_pub")
    a("L_o_finalize:")
    a(f"v_bitop3_b32 v{vT}, v{vR}, v{vR+4}, s{sTag} bitop3:0x7e\nv_bitop3_b32 v{vT}, v{vT}, v{vR+8}, s{sTag} bitop3:0xf6\nv_and_b32 v{vT}, 1, v{vT}\nv_cmp_ne_u32 vcc, 0, v{vT}")
    for i in (0, 2): pk(a, 'add', vR + i, fA + i, vR + i); pk(a, 'add', vR + 4 + i, vR + 4 + i, vR + 8 + i)
    a(f"s_lshl_b32 s{S_G+1}, s{sFs}, 16\ns_cbranch_vccnz L_o_again")
    for i in (0, 2):
        pk(a, 'add', vR + i, vR + i, vR + 4 + i)
        a(f"v_pk_fma_f32 v[{vR+i}:{vR+i+1}], v[{vR+i}:{vR+i+1}], v[{fG}:{fG+1}], v[{fX+i}:{fX+i+1}] op_sel_hi:[1,0,1]")
    cvt(a, vR + 4, vR, vR + 1); cvt(a, vR + 5, vR + 2, vR + 3)
    a(f"buffer_store_dwordx2 v[{vR+4}:{vR+5}], v{vXo}, {SO}, s{S_G+1} offen")
    a(f"v_not_b32 v{vT}, v{vSv}\nv_not_b32 v{vU}, v{vSv+1}\nv_bfe_u32 v{vT}, v{vT}, 5, 6\nv_bfe_u32 v{vU}, v{vU}, 5, 6")
    a(f"v_cmp_eq_u32 vcc, s{sFs}, v{vT}\nv_cmp_eq_u32 s[{sT1}:{sT2}], s{sFs}, v{vU}\ns_or_b64 vcc, vcc, s[{sT1}:{sT2}]\ns_cbranch_scc1 L_o_save")
    a("L_o_saved:")
    a(f"s_cmp_eq_u32 s{sFs}, {o.get('yseg', 58)}\ns_cbranch_scc1 L_o_ysum")
    a("L_o_ydone:")
    tl(a, 96, sFs)
    a(f"s_cmp_eq_u32 s{sDef}, 2\ns_cbranch_scc1 L_o_idle")
    a("L_o_pub:")
    a(f"s_and_b32 s{sSl}, s{sS}, 1\ns_lshl_b32 s{sSl}, s{sSl}, 19\ns_bfe_u32 s{sTag}, s{sS}, 0x10001\ns_mov_b32 s{sFs}, s{sS}")
    a(f"v_mul_f32 v{fG}, {hex(f32bits(-LOG2E))}, v{vG}\nv_exp_f32 v{fG}, v{fG}")
    for r in range(1, 4):
        a(f"v_and_or_b32 v{acc+4*r}, v{acc+4*r}, -2, s{sTag}")
        a(f"buffer_store_dwordx4 v[{acc+4*r}:{acc+4*r+3}], v{vPs}, {WS}, s{sSl} offen offset:{1024*r}")
    a(f"v_add_f32 v{fG}, 1.0, v{fG}\nv_rcp_f32 v{fG}, v{fG}")
    a(f"v_lshlrev_b32 v{fX}, 16, v{vX}\nv_and_b32 v{fX+1}, 0xffff0000, v{vX}\nv_lshlrev_b32 v{fX+2}, 16, v{vX+1}\nv_and_b32 v{fX+3}, 0xffff0000, v{vX+1}")
    for i in (0, 2): pk(a, 'add', fA + i, acc + i, fX + i, "neg_lo:[0,1] neg_hi:[0,1]")
    a(f"s_add_u32 s{sS}, s{sS}, 1\ns_add_u32 s{sDef}, s{sPend}, 1\ns_cmp_eq_u32 s{sPend}, 0\ns_cbranch_scc1 L_o_loop")
    a("L_o_again:")
    a(f"{ldP}\ns_sub_u32 s{S_BUD}, s{S_BUD}, 1\ns_cbranch_scc1 L_abort\ns_waitcnt vmcnt(0)\ns_branch L_o_finalize")
    a("L_o_idle:")
    a(f"s_cmp_lt_u32 s{sS}, 64\ns_cbranch_scc1 L_o_fetch")
    a(f"v_and_b32 v{vT}, 3, v0\nv_lshlrev_b32 v{vT}, 8, v{vT}\ns_lshl_b32 s{S_G}, s{S_W}, 10\ns_add_u32 s{S_G}, s{S_G}, {SAVE}\nv_add_u32 v{vT}, s{S_G}, v{vT}\nv_lshrrev_b32 v{vU}, 2, v0")
    a(f"ds_read2_b32 v[{vG}:{vG+1}], v{vT} offset0:16 offset1:48\nv_lshl_add_u32 v{vT}, v{vU}, 2, v{vT}\nds_read2_b32 v[{vX}:{vX+1}], v{vT} offset0:0 offset1:32")
    a(f"s_lshr_b32 s{S_G}, s{sKq}, 1")
    for i in range(2):
        a(f"v_not_b32 v{vR+i}, v{vSv+i}\nv_bfe_u32 v{vT}, v{vR+i}, 4, 1\nv_xor_b32 v{vT}, s{S_G}, v{vT}\nv_and_b32 v{vR+i}, 0x7ff, v{vR+i}\nv_lshlrev_b32 v{vR+i}, 11, v{vR+i}")
        a(f"v_lshl_add_u32 v{vR+i}, v{vU}, 1, v{vR+i}\nv_lshl_add_u32 v{vR+i}, v{vT}, 31, v{vR+i}")
    a("s_waitcnt lgkmcnt(0)")
    for i in range(2):
        a(f"v_sub_f32 v{vG+i}, 1.0, v{vG+i}\nv_fma_f32 v{vX+i}, v{vG+i}, v{vY+i}, v{vX+i}")
        cvt(a, vX + i, vX + i, vX + i)
    a("s_waitcnt vmcnt(0)")
    for i in range(2): a(f"buffer_store_short v{vX+i}, v{vR+i}, {SO}, s{sCol} offen")
    a("s_branch L_drain")
    a("L_o_save:")
    a(f"s_lshl_b32 s{S_G}, s{sFs}, 5\nv_add_u32 v{vT}, s{S_G}, v{vTok}")
    for k in range(8):
        a(f"v_cmp_eq_u32 vcc, s{sKey+k}, v{vT}\ns_mov_b64 exec, vcc\nds_write_b128 v{vSa}, v[{vR}:{vR+3}] offset:{128*k}\nds_write_b32 v{vSa}, v{fG} offset:{128*k+64}\ns_mov_b64 exec, -1")
    a("s_waitcnt lgkmcnt(0)\ns_branch L_o_saved")
    a("L_o_ysum:")
    a(f"v_min_u32 v{vT}, 55, v0\nv_lshlrev_b32 v{vT}, 2, v{vT}\nv_add_u32 v{vT}, {FL_Y + 256}, v{vT}")
    poll(a, vT, vU, 0)
    a(f"s_lshl_b32 s{S_G}, s{sCol}, 4\ns_add_u32 s{S_G}, s{S_G}, {WS_YP}\nv_lshlrev_b32 v{vT}, 3, v0")
    for m in range(56):
        a(f"buffer_load_dwordx2 v[{big+2*m}:{big+2*m+1}], v{vT}, {WS}, s{S_G} offen sc1\ns_add_u32 s{S_G}, s{S_G}, 0x8000")
    for i in range(2):
        a(f"v_not_b32 v{vY+i}, v{vSv+i}\nv_ashrrev_i32 v{vY+i}, 31, v{vY+i}\nv_or_b32 v{vY+i}, 0x80000000, v{vY+i}\nv_xor_b32 v{vY+i}, v{vY+i}, v{vSv+i}\nv_and_b32 v{vY+i}, 0xffff0000, v{vY+i}")
        a(f"v_mul_f32 v{vY+i}, {hex(f32bits(-LOG2E))}, v{vY+i}\nv_exp_f32 v{vY+i}, v{vY+i}\nv_add_f32 v{vY+i}, 1.0, v{vY+i}\nv_rcp_f32 v{vY+i}, v{vY+i}")
    a("s_waitcnt vmcnt(0)")
    for m in range(1, 56): pk(a, 'add', big, big, big + 2 * m)
    pk(a, 'mul', vY, vY, big)
    a("s_branch L_o_ydone")
```

```python
import sys
from common import *
from rec import gen_rec
from xside import gen_kv, gen_q, gen_o

HEADER = open('ref_header.txt').read().split('; Override launch')[0]

def gen(o):
    a = Asm()
    TL['on'] = bool(o.get('tl'))
    a(f"s_cmp_ge_u32 s2, 256\ns_cbranch_scc1 L_exit")
    if TL['on']: a("s_memrealtime s[94:95]")
    a("s_load_dwordx16 s[16:31], s[0:1], 0\ns_load_dwordx16 s[32:47], s[0:1], 64")
    a(f"s_getreg_b32 s{S_X}, hwreg(HW_REG_XCC_ID, 0, 4)")
    a(f"v_lshrrev_b32 v1, 6, v0\nv_and_b32 v0, 63, v0\nv_readfirstlane_b32 s{S_W}, v1")
    a(f"s_mov_b32 s{S_BUD}, {o.get('budget', 1 << 17)}\ns_mov_b32 s{S_PAR}, 1")
    a(f"s_and_b32 s{S_X}, s{S_X}, 7")
    a("s_waitcnt lgkmcnt(0)")
    srd(a, S_WS, P_WSP, WS_SIZE)
    l = a.label('tk')
    a(f"v_mov_b32 v3, {LDS_BYTES - 16}")
    a(f"s_cmp_lg_u32 s{S_W}, 0\ns_cbranch_scc1 {l}")
    a(f"s_lshl_b32 s{S_G}, s{S_X}, 2\nv_mov_b32 v1, s{S_G}\nv_mov_b32 v2, 1\ns_mov_b64 exec, 1")
    a(f"global_atomic_add v2, v1, v2, s[{P_DBG}:{P_DBG+1}] sc0\ns_waitcnt vmcnt(0)\nds_write_b32 v3, v2\ns_mov_b64 exec, -1\ns_waitcnt lgkmcnt(0)")
    a(f"{l}:")
    a(f"s_barrier\nds_read_b32 v2, v3\ns_waitcnt lgkmcnt(0)\nv_readfirstlane_b32 s{S_J}, v2")
    a(f"s_cmp_ge_u32 s{S_J}, 32\ns_cbranch_scc1 L_abort")
    if TL['on']:
        tl(a, 1); a(f"v_mov_b32 v252, s94\ns_mov_b64 exec, 1\nv_add_u32 v253, -4, v253\nbuffer_store_dword v252, v253, s[{S_WS}:{S_WS+3}], 0 offen\ns_mov_b64 exec, -1")
    if o.get('par', 0):
        l = a.label('par')
        a(f"s_cmp_lg_u32 s2, 0\ns_cbranch_scc1 {l}\ns_mov_b32 s{S_PAR}, 0x2001\n{l}:")
    a(f"s_cmp_lt_u32 s{S_X}, 4\ns_cbranch_scc1 L_rec")
    roles = o.get('roles', 15)
    if roles & 2: a(f"s_cmp_lt_u32 s{S_X}, 6\ns_cbranch_scc1 L_kv")
    if roles & 4: a(f"s_cmp_eq_u32 s{S_X}, 6\ns_cbranch_scc1 L_q")
    if roles & 8: a(f"s_cmp_eq_u32 s{S_X}, 7\ns_cbranch_scc1 L_o")
    if not roles & 1: a("L_rec:")
    arrive(a)
    a("s_branch L_drain")
    nt = o.get('nt', 16)
    for bit, fn in ((2, gen_kv), (4, gen_q), (8, gen_o), (1, gen_rec)):
        WFL['f'] = 'nt' if nt & bit else ''
        if roles & bit: fn(a, o)
    a("L_abort:")
    a(f"v_mov_b32 v1, 132\nv_mov_b32 v2, 1\ns_mov_b64 exec, 1\nglobal_atomic_add v1, v2, s[{P_DBG}:{P_DBG+1}]")
    a("L_drain:")
    tl(a, 4)
    a("s_waitcnt vmcnt(0) lgkmcnt(0)")
    a("L_exit:")
    a("s_endpgm")
    bad = a.check_branches()
    for b in bad: print("BRANCH HAZARD:", b, file=sys.stderr)
    txt = HEADER + f"; @launch grid=(256,1,1) block=(256,1,1) lds={LDS_BYTES}\n"
    txt += f""".amdgcn_target "amdgcn-amd-amdhsa--gfx950"
.text
.globl {KNAME}
.p2align 8
.type {KNAME},@function
{KNAME}:
""" + a.text() + f""".section .rodata,"a"
.p2align 6
.amdhsa_kernel {KNAME}
  .amdhsa_next_free_vgpr 512
  .amdhsa_next_free_sgpr 102
  .amdhsa_accum_offset 256
  .amdhsa_group_segment_fixed_size 0
  .amdhsa_kernarg_size 128
  .amdhsa_user_sgpr_count 2
  .amdhsa_user_sgpr_kernarg_segment_ptr 1
  .amdhsa_system_sgpr_workgroup_id_x 1
  .amdhsa_float_denorm_mode_32 3
.end_amdhsa_kernel
"""
    return txt

if __name__ == '__main__':
    o = {}
    for kv in sys.argv[2:]:
        k, v = kv.split('='); o[k] = int(v, 0)
    open(sys.argv[1], 'w').write(gen(o))
```

```python
from common import *
import math

def gen_rec(a, o):
    stamps = o.get('stamps', False)
    GAP = o.get('gap', 8)
    ES = o.get('es', 2); EO = o.get('eo', 0)
    assert not (ES == 2 and EO)
    V = VAlloc(1)
    vIdx = V(); vLdA = V(); vL16 = V(); vT0 = V(); vT1 = V(); vT2 = V(); vT3 = V()
    vA = V(16, 4)
    aQ = [V(4, 4), V(4, 4)]; aK = [V(4, 4), V(4, 4)]; aV = [V(4, 4), V(4, 4)]; aW = [V(4, 4), V(4, 4)]
    vP = [V(4, 4), V(4, 4)]
    vSel = V(4, 4); vSelV = V(4, 4); vOnes = V(4, 4); vSelW = V(4, 4)
    vOut = V(4, 4); vPoison = V(4, 4)
    vF2 = [V(4, 4), V(4, 4)]
    vStA = V(); vStO = V(); vStX = V(); vStM = V(); vLdX = V(); vLdM = V()
    vLdC = [V(), V(), V()]; vStC = V()
    vLdK = [V()]; vLdV = [V()]; vFl = V(); vFlA = V()
    vVpW = V(); vVmW = V(); vKvmR = V(); vStKVM = V(); vFlM = V(); vPzA = V(); vPzS = V()
    vStamp = V(); vStampA = V()
    LAY = o.get('lay', 1)
    vLdAx = [vLdA, V(), V(), V()]
    vWq = V(); vWo = V(); vTrQ = V(); vTrV = V()
    vMx = V(2, 2)
    vEoS = V(); vEoL = V(); vEsS = V(); vEsL = V(); vStep = V(); vEp = V(4, 4)
    base = V(0, 4)
    vR = V(24, 4); vF = V(4, 4); vTm = V(4, 4); vTx = [V(4, 4), V(4, 4)]; vKx = [V(4, 4), V(4, 4)]
    vVx = vKx
    vSX = V(16, 4); vSM = V(4, 4)
    vVr = [V(4, 4), V(4, 4)]; vVm = [V(4, 4), V(4, 4)]
    vPf = V(4, 4); vPm = V(4, 4); vL = V(4, 4); vO = vF2
    NS = o.get('csets', 3)
    vC = base + 12
    assert vC + 12 * NS <= 250
    sS, sSlA, sSlAn, sSlO, sSlS, sSlC, sTag, sKV, sSeg, sPz, sScale = range(S_G + 4, S_G + 15)
    sRow, sRowO = S_G + 15, S_G + 16
    sH, sC = S_G + 17, S_G + 18
    sPzS = S_G + 19
    sRot = 101
    sFc = 28
    sOne, sCnt, sTgt = S_B0, S_B0 + 1, S_B0 + 2
    EC = o.get('ec', 0); EA = o.get('ea', 0)
    sStamp = S_G + 20
    QKP = LDS_MISC; VP = QKP + 8192; WP = VP + 4096; KVM = WP + 4096
    WS = f"s[{S_WS}:{S_WS+3}]"

    a("L_rec:")
    a(f"s_lshr_b32 s{sH}, s{S_J}, 2\ns_lshl_b32 s{S_G}, s{S_X}, 3\ns_add_u32 s{sH}, s{sH}, s{S_G}\ns_and_b32 s{sC}, s{S_J}, 3")
    ROT = o.get('rot', 15)
    a(f"s_and_b32 s{sRot}, s{S_J}, {ROT}\ns_lshl_b32 s{S_G}, s{S_W}, 2\ns_xor_b32 s{sRot}, s{sRot}, s{S_G}")
    a(f"v_and_b32 v{vT0}, 7, v0\nv_bfe_u32 v{vT1}, v0, 3, 1\nv_lshrrev_b32 v{vT2}, 4, v0\nv_lshlrev_b32 v{vL16}, 4, v0")
    a(f"v_mov_b32 v{vPoison}, -1\nv_mov_b32 v{vPoison+1}, -1\nv_mov_b32 v{vPoison+2}, -1\nv_mov_b32 v{vPoison+3}, -1")
    a(f"s_lshl_b32 s{S_G}, s{S_X}, 15\ns_add_u32 s{S_G}, s{S_G}, {WS_RA}\ns_lshl_b32 s{S_G+1}, s{S_J}, 10\ns_add_u32 s{S_G+1}, s{S_G+1}, s{S_G}")
    a(f"v_lshlrev_b32 v{vT3}, 8, v{vT2}\nv_add_u32 v{vT3}, s{S_G+1}, v{vT3}")
    a(f"v_and_b32 v{vStA}, 15, v0\nv_lshl_add_u32 v{vStA}, v{vStA}, 3, v{vT3}")
    a(f"v_lshl_add_u32 v{vStO}, v{vT0}, 4, v{vT3}\nv_lshl_add_u32 v{vStO}, v{vT1}, 31, v{vStO}")
    a(f"s_lshl_b32 s{S_G+2}, s{sRot}, 11\ns_add_u32 s{S_G+2}, s{S_G+2}, s{S_G}")
    a(f"v_lshrrev_b32 v{vT3}, 3, v0\nv_lshlrev_b32 v{vT3}, 8, v{vT3}\nv_lshl_add_u32 v{vT3}, v{vT0}, 4, v{vT3}\nv_add_u32 v{vLdA}, s{S_G+2}, v{vT3}")
    for t in range(1, 4): a(f"v_xor_b32 v{vLdAx[t]}, {t * 2048}, v{vLdA}")
    a(f"v_add_u32 v{vPzA}, s{S_G+1}, v{vL16}")
    a(f"s_lshl_b32 s{S_G+2}, s{sH}, 13\ns_add_u32 s{S_G+2}, s{S_G+2}, {WS_RS}")
    a(f"v_add_u32 v{vLdX}, s{S_G+2}, v{vL16}")
    a(f"s_lshl_b32 s{S_G+3}, s{sC}, 10\nv_add_u32 v{vPzS}, s{S_G+3}, v{vLdX}\nv_lshl_add_u32 v{vStX}, v{vT1}, 31, v{vPzS}")
    a(f"v_lshlrev_b32 v{vT3}, 2, v0\ns_add_u32 s{S_G+2}, s{S_G+2}, 4096\nv_add_u32 v{vLdM}, s{S_G+2}, v{vT3}")
    a(f"s_lshl_b32 s{S_G+3}, s{sC}, 8\ns_add_u32 s{S_G+2}, s{S_G+2}, s{S_G+3}")
    a(f"v_and_b32 v{vT3}, 1, v{vT2}\nv_lshlrev_b32 v{vT3}, 4, v{vT3}\nv_lshl_add_u32 v{vT3}, v{vT0}, 5, v{vT3}\nv_add_u32 v{vStM}, s{S_G+2}, v{vT3}")
    a(f"v_xor_b32 v{vT3}, 8, v0\nv_and_b32 v{vT3}, 40, v{vT3}\nv_min_u32 v{vT3}, 1, v{vT3}\nv_lshl_add_u32 v{vStM}, v{vT3}, 31, v{vStM}")
    a(f"s_lshr_b32 s{S_G+2}, s{S_J}, 1\ns_lshl_b32 s{S_G+2}, s{S_G+2}, 14\ns_and_b32 s{S_G+3}, s{S_J}, 1\ns_lshl_b32 s{S_G+3}, s{S_G+3}, 12")
    a(f"s_add_u32 s{S_G+2}, s{S_G+2}, s{S_G+3}\ns_lshl_b32 s{S_G+3}, s{S_X}, 10\ns_add_u32 s{S_G+2}, s{S_G+2}, s{S_G+3}\ns_add_u32 s{S_G+2}, s{S_G+2}, {WS_RC}")
    a(f"v_add_u32 v{vStC}, s{S_G+2}, v{vL16}")
    for k in range(3): a(f"v_xor_b32 v{vLdC[k]}, {(k+1)*1024}, v{vStC}")
    a(f"s_lshr_b32 s{S_G+2}, s{S_J}, 3\ns_lshl_b32 s{S_G+2}, s{S_G+2}, 14\ns_and_b32 s{S_G+3}, s{S_J}, 7\ns_lshl_b32 s{S_G+3}, s{S_G+3}, 10")
    a(f"s_add_u32 s{S_G+2}, s{S_G+2}, s{S_G+3}\ns_lshl_b32 s{S_G+3}, s{S_X}, 8\ns_add_u32 s{S_G+2}, s{S_G+2}, s{S_G+3}\ns_add_u32 s{sFc}, s{S_G+2}, {WS_FC}")
    a(f"s_lshl_b32 s{S_G+2}, s{S_X}, 5\ns_add_u32 s{S_G+2}, s{S_G+2}, s{S_J}\ns_lshl_b32 s{S_G+3}, s{S_G+2}, 11")
    a(f"v_lshl_add_u32 v{vT3}, v{vT1}, 4, v{vT0}\nv_lshlrev_b32 v{vT3}, 4, v{vT3}\nv_lshl_add_u32 v{vT3}, v{vT2}, 9, v{vT3}")
    a(f"v_add_u32 v{vLdK[0]}, s{S_G+3}, v{vT3}")
    a(f"v_bfe_u32 v{vT3}, v0, 2, 2\nv_and_b32 v{vVmW}, 3, v0\nv_lshl_add_u32 v{vVmW}, v{vT3}, 3, v{vVmW}\nv_lshlrev_b32 v{vVmW}, 4, v{vVmW}")
    a(f"v_lshl_add_u32 v{vT3}, v{vT2}, 9, v{vVmW}\ns_add_u32 s{S_G+3}, s{S_G+3}, {WS_VX}\nv_add_u32 v{vLdV[0]}, s{S_G+3}, v{vT3}")
    a(f"v_lshl_add_u32 v{vVmW}, v{vT2}, 2, v{vVmW}\nv_add_u32 v{vVmW}, {KVM + 1024}, v{vVmW}")
    a(f"v_lshrrev_b32 v{vT3}, 3, v0\nv_lshlrev_b32 v{vT3}, 8, v{vT3}\nv_lshl_add_u32 v{vT3}, v{vT0}, 4, v{vT3}\nv_add_u32 v{vT3}, {KVM + 128}, v{vT3}")
    a(f"v_add_u32 v{vKvmR}, {KVM + 512}, v{vL16}\nv_cmp_gt_u32 vcc, 32, v0\nv_cndmask_b32 v{vKvmR}, v{vKvmR}, v{vT3}, vcc")
    a(f"s_lshl_b32 s{S_G+3}, s{S_G+2}, 10\ns_add_u32 s{S_G+3}, s{S_G+3}, {WS_KVM}\nv_add_u32 v{vStKVM}, s{S_G+3}, v{vL16}")
    a(f"s_lshl_b32 s{S_G+3}, s{sH}, 7\ns_add_u32 s{S_G+3}, s{S_G+3}, {FL_KV}\ns_lshl_b32 s{S_G+2}, s{S_W}, 1\ns_add_u32 s{S_G+2}, s{S_G+2}, s{S_G+3}\nv_mov_b32 v{vFlA}, s{S_G+2}\ns_lshl_b32 s{S_G+2}, s{sC}, 3\nv_add_u32 v{vFlA}, s{S_G+2}, v{vFlA}")
    a(f"s_lshl_b32 s{S_G+2}, s{sC}, 2\ns_add_u32 s{S_G+3}, s{S_G+3}, s{S_G+2}\ns_add_u32 s{S_G+3}, s{S_G+3}, {FL_M - FL_KV}")
    a(f"v_mov_b32 v{vFlM}, s{S_G+3}\nv_cmp_eq_u32 vcc, 0, v0\nv_mov_b32 v{vT3}, {OOB}\nv_cndmask_b32 v{vFlM}, v{vT3}, v{vFlM}, vcc")
    ER = o.get('erep', 4)
    a(f"s_lshl_b32 s{S_G+2}, s{S_X}, 11\ns_add_u32 s{S_G+2}, s{S_G+2}, {FL_EO}\ns_lshl_b32 s{S_G+3}, s{S_J}, 2\ns_add_u32 s{S_G+3}, s{S_G+3}, s{S_G+2}")
    a(f"v_lshlrev_b32 v{vEoS}, 8, v0\nv_add_u32 v{vEoS}, s{S_G+3}, v{vEoS}\nv_cmp_gt_u32 vcc, {ER}, v0\nv_cndmask_b32 v{vEoS}, v{vT3}, v{vEoS}, vcc")
    a(f"s_and_b32 s{S_G+3}, s{S_J}, {ER-1}\ns_lshl_b32 s{S_G+3}, s{S_G+3}, 8\ns_add_u32 s{S_G+3}, s{S_G+3}, s{S_G+2}")
    a(f"v_and_b32 v{vEoL}, 31, v0\nv_lshlrev_b32 v{vEoL}, 2, v{vEoL}\nv_add_u32 v{vEoL}, s{S_G+3}, v{vEoL}")
    a(f"s_lshl_b32 s{S_G+2}, s{sH}, 8\ns_add_u32 s{S_G+2}, s{S_G+2}, {FL_ES}\ns_lshl_b32 s{S_G+3}, s{sC}, 2\ns_add_u32 s{S_G+3}, s{S_G+3}, s{S_G+2}")
    a(f"v_mov_b32 v{vEsS}, s{S_G+3}\nv_cmp_eq_u32 vcc, 0, v0\nv_cndmask_b32 v{vEsS}, v{vT3}, v{vEsS}, vcc")
    a(f"v_and_b32 v{vEsL}, 3, v0\nv_lshlrev_b32 v{vEsL}, 2, v{vEsL}\nv_add_u32 v{vEsL}, s{S_G+2}, v{vEsL}")
    a(f"s_lshr_b32 s{S_G+2}, s{S_W}, 1\ns_lshl_b32 s{S_G+2}, s{S_G+2}, 10\ns_and_b32 s{S_G+3}, s{S_W}, 1\ns_lshl_b32 s{S_G+3}, s{S_G+3}, 3")
    a(f"s_add_u32 s{S_G+2}, s{S_G+2}, s{S_G+3}\ns_add_u32 s{S_G+2}, s{S_G+2}, {VP}\nv_add_u32 v{vVpW}, s{S_G+2}, v{vL16}")
    a(f"v_add_u32 v{vL16}, {LDS_MISC}, v{vL16}")
    a(f"v_mov_b32 v{vIdx}, 0x4444\nv_mul_u32_u24 v{vT3}, 0xaaaa, v{vT1}\nv_add_u32 v{vIdx}, v{vIdx}, v{vT3}")
    a(f"v_and_b32 v{vA}, 15, v0\nv_and_b32 v{vA+1}, 1, v{vT2}\nv_lshlrev_b32 v{vA+1}, 2, v{vA+1}\nv_sub_u32 v{vA+2}, v{vA}, v{vA+1}")
    a(f"v_mov_b32 v{vA+4}, 0x3f80\nv_mov_b32 v{vA+5}, 0x3f800000")
    for p in range(4):
        t = 8 * (p >> 1) + 2 * (p & 1)
        a(f"v_cmp_eq_u32 vcc, {t}, v{vA+2}\nv_cndmask_b32 v{vSel+p}, 0, v{vA+4}, vcc")
        a(f"v_cmp_eq_u32 vcc, {t+1}, v{vA+2}\nv_cndmask_b32 v{vSel+p}, v{vSel+p}, v{vA+5}, vcc")
    a(f"v_lshrrev_b32 v{vA+3}, 2, v{vA}\nv_and_b32 v{vA+6}, 1, v{vA}\nv_lshl_add_u32 v{vA+3}, v{vA+3}, 1, v{vA+6}")
    a(f"v_and_b32 v{vA+6}, 2, v{vA}\nv_lshl_add_u32 v{vA+3}, v{vA+6}, 5, v{vA+3}\nv_sub_u32 v{vA+3}, v{vA+3}, v{vA+1}")
    for p in range(4):
        t = 2 * (p & 1)
        a(f"v_cmp_eq_u32 vcc, {t}, v{vA+3}\nv_cndmask_b32 v{vSelV+p}, 0, v{vA+4}, vcc")
        a(f"v_cmp_eq_u32 vcc, {t+1}, v{vA+3}\nv_cndmask_b32 v{vSelV+p}, v{vSelV+p}, v{vA+5}, vcc")
    a(f"v_sub_u32 v{vA+2}, v{vA+2}, v{vA+1}")
    for p in range(4):
        t = 4 * (p & 1) + (p >> 1)
        a(f"v_cmp_eq_u32 vcc, {t}, v{vA+2}\nv_cndmask_b32 v{vSelW+p}, 0, v{vA+4}, vcc")
        a(f"v_cmp_eq_u32 vcc, {t+2}, v{vA+2}\nv_cndmask_b32 v{vSelW+p}, v{vSelW+p}, v{vA+5}, vcc")
    for p in range(4): a(f"v_mov_b32 v{vOnes+p}, 0x3f803f80")
    a(f"s_mov_b32 s{sScale}, {hex(f32bits(128 ** -0.5 * math.log2(math.e)))}")

    a(f"s_lshl_b32 s{S_G}, s{S_W}, 17\ns_lshl_b32 s{S_G+1}, s{S_W}, 18")
    a(f"buffer_store_dwordx4 v[{vPoison}:{vPoison+3}], v{vPzA}, {WS}, s{S_G} offen")
    a(f"buffer_store_dwordx4 v[{vPoison}:{vPoison+3}], v{vPzS}, {WS}, s{S_G+1} offen")
    a(f"buffer_store_dwordx4 v[{vPoison}:{vPoison+3}], v{vStM}, {WS}, s{S_G+1} offen")
    a(f"s_lshr_b32 s{S_G}, s{S_W}, 1\ns_lshl_b32 s{S_G}, s{S_G}, 18\ns_and_b32 s{S_G+1}, s{S_W}, 1\ns_lshl_b32 s{S_G+1}, s{S_G+1}, 13\ns_add_u32 s{S_G}, s{S_G}, s{S_G+1}")
    a(f"buffer_store_dwordx4 v[{vPoison}:{vPoison+3}], v{vStC}, {WS}, s{S_G} offen sc1")
    l = a.label('m0')
    a(f"s_cmp_lg_u32 s{S_W}, 0\ns_cbranch_scc1 {l}")
    a(f"v_mov_b32 v{vT3}, 0\nbuffer_store_dword v{vT3}, v{vFlM}, {WS}, 0 offen sc1")
    a(f"buffer_store_dword v{vT3}, v{vEoS}, {WS}, 0 offen\nbuffer_store_dword v{vT3}, v{vEsS}, {WS}, 0 offen")
    a(f"buffer_store_dword v{vT3}, v{vEoS}, {WS}, 0 offen offset:128")
    a(f"v_and_b32 v{vOut}, 1, v0\nv_lshlrev_b32 v{vOut}, 13, v{vOut}\nbuffer_store_dword v{vT3}, v{vOut}, {WS}, s{sFc} offen sc1")
    srd(a, S_T, P_MEM0, 16384)
    a(f"v_bfe_u32 v{vT3}, v0, 1, 3\nv_lshlrev_b32 v{vT3}, 11, v{vT3}\nv_lshl_add_u32 v{vT3}, v{vT2}, 4, v{vT3}\nv_and_b32 v{vOut}, 1, v0\nv_lshl_add_u32 v{vT3}, v{vOut}, 3, v{vT3}\ns_lshl_b32 s{S_G}, s{S_J}, 6")
    a(f"buffer_load_dwordx2 v[{vOut}:{vOut+1}], v{vT3}, s[{S_T}:{S_T+3}], s{S_G} offen\ns_waitcnt vmcnt(0)")
    a(f"v_min_u32 v{vOut}, -2, v{vOut}\nv_min_u32 v{vOut+1}, -2, v{vOut+1}")
    a(f"buffer_store_dwordx2 v[{vOut}:{vOut+1}], v{vStA}, {WS}, 0 offen")
    a(f"{l}:")

    for b, p in enumerate((P_WQ, P_WK, P_WV, P_WO)): srd(a, S_B0 + 4 * b, p, 8 << 20)
    a(f"v_lshrrev_b32 v{vT3}, 2, v0\nv_and_b32 v{vWo}, 3, v0\nv_lshlrev_b32 v{vWo}, 4, v{vWo}")
    a(f"v_lshl_add_u32 v{vWq}, v{vT3}, 13, v{vWo}\nv_lshl_add_u32 v{vWo}, v{vT3}, 11, v{vWo}")
    a(f"s_lshl_b32 s{sRow}, s{sRot}, 19\ns_lshl_b32 s{S_G}, s{S_X}, 11\ns_add_u32 s{sRow}, s{sRow}, s{S_G}\ns_lshl_b32 s{S_G}, s{S_J}, 6\ns_add_u32 s{sRow}, s{sRow}, s{S_G}")
    a(f"s_lshl_b32 s{sRowO}, s{S_X}, 21\ns_add_u32 s{sRowO}, s{sRowO}, s{S_G}\ns_lshl_b32 s{S_G}, s{sRot}, 17\ns_add_u32 s{sRowO}, s{sRowO}, s{S_G}")
    a(f"v_lshrrev_b32 v{vA}, 5, v0\nv_lshlrev_b32 v{vA}, 4, v{vA}\nv_lshl_add_u32 v{vA}, v{vT1}, 3, v{vA}")
    a(f"v_and_b32 v{vA+1}, 1, v{vT2}\nv_lshl_add_u32 v{vA}, v{vA+1}, 2, v{vA}\nv_bfe_u32 v{vA+1}, v0, 2, 1\nv_add_u32 v{vA}, v{vA}, v{vA+1}")
    a(f"v_lshlrev_b32 v{vA}, 6, v{vA}\ns_lshl_b32 s{S_G}, s{S_W}, 15\nv_add_u32 v{vA}, s{S_G}, v{vA}")
    a(f"v_and_b32 v{vA+1}, 3, v0\nv_lshl_add_u32 v{vTrV}, v{vA+1}, 4, v{vA}")
    a(f"v_and_b32 v{vA+1}, 1, v0\nv_lshl_add_u32 v{vTrQ}, v{vA+1}, 3, v{vA}\nv_bfe_u32 v{vA+1}, v0, 1, 1\nv_lshl_add_u32 v{vTrQ}, v{vA+1}, 5, v{vTrQ}")
    def wreg(blk, t, tile): return blk * 64 + (t * 2 + tile) * 8
    def trfun(ch):
        blk, half = ch // 2, ch % 2
        out = []
        for tt in range(2):
            for tile in range(2):
                for p in range(4):
                    row = 64 * tt + 32 * (p >> 1) + 2 * (p & 1)
                    if blk < 2: out.append((wreg(blk, 2 * half + tt, tile) + 2 * p, vTrQ, row * 64 + tile * 16))
                    else:       out.append((wreg(blk, 2 * half + tt, tile) + 2 * p, vTrV, row * 64 + tile * 8))
        return out
    def src(ch):
        blk = ch // 2; pitch = 8192 if blk < 3 else 2048
        return (S_B0 + 4 * blk, vWq if blk < 3 else vWo, sRow if blk < 3 else sRowO, [((ch % 2) * 128 + 16 * i) * pitch for i in range(8)])
    load_weights(a, 8, src, trfun, after_first=lambda: arrive(a))
    tl(a, 2)
    wait_all_arrived(a)
    tl(a, 3)
    if 'par' not in o:
        sA, sB, sN = S_B0 + 4, S_B0 + 5, S_B0 + 6; sT = S_B0 + 8
        l = a.label('pb'); lp = a.label('pl')
        a(f"s_or_b32 s{S_G}, s{S_X}, s{S_J}\ns_xor_b32 s{S_G+1}, s{S_W}, 3\ns_or_b32 s{S_G}, s{S_G}, s{S_G+1}\ns_cbranch_scc1 {l}")
        a(f"s_mov_b32 s{sA}, -1\ns_mov_b32 s{sB}, -1\ns_mov_b32 s{sN}, {o.get('nprobe', 3)}\ns_mov_b32 s{S_G+2}, {WS_FC}\ns_mov_b32 s{S_G+3}, {WS_FC + 0x2000}")
        a(f"{lp}:")
        for sD_, sO_ in ((sA, S_G + 2), (sB, S_G + 3)):
            a(f"s_memtime s[{sT}:{sT+1}]\ns_waitcnt lgkmcnt(0)\ns_load_dword s{S_G}, s[{P_WSP}:{P_WSP+1}], s{sO_} glc\ns_waitcnt lgkmcnt(0)")
            a(f"s_memtime s[{sT+2}:{sT+3}]\ns_waitcnt lgkmcnt(0)\ns_sub_u32 s{sT}, s{sT+2}, s{sT}\ns_min_u32 s{sD_}, s{sD_}, s{sT}")
        a(f"s_sub_u32 s{sN}, s{sN}, 1\ns_cbranch_scc0 {lp}")
        a(f"s_cmp_lt_u32 s{sB}, s{sA}\ns_cselect_b32 s{S_G}, 0x2001, 1\nv_mov_b32 v250, 136\nv_mov_b32 v251, s{S_G}\ns_mov_b64 exec, 1")
        a(f"global_store_dword v250, v251, s[{P_DBG}:{P_DBG+1}] sc1\ns_mov_b64 exec, -1")
        a(f"{l}:")
        l = a.label('pw'); lp = a.label('pv')
        a(f"s_cmp_lg_u32 s{S_W}, 1\ns_cbranch_scc1 {l}\nv_mov_b32 v250, 136")
        a(f"{lp}:")
        a(f"global_load_dword v251, v250, s[{P_DBG}:{P_DBG+1}] sc1\ns_sub_u32 s{S_BUD}, s{S_BUD}, 1\ns_cbranch_scc1 L_abort\ns_waitcnt vmcnt(0)")
        a(f"v_readfirstlane_b32 s{S_PAR}, v251\ns_cmp_eq_u32 s{S_PAR}, 0\ns_cbranch_scc1 {lp}\ns_and_b32 s{S_PAR}, s{S_PAR}, 0x2000")
        a(f"{l}:")
    a(f"s_add_u32 s{sFc}, s{sFc}, s{S_PAR}")
    for k in range(1, 4): a(f"s_xor_b32 s{sFc+k}, s{sFc}, {256*k}")
    a(f"s_mov_b32 s{sOne}, 1\ns_mov_b32 s{sCnt}, 0\ns_mov_b32 s{sTgt}, 0")
    if stamps:
        a(f"s_lshl_b32 s{S_G}, s{S_X}, 5\ns_add_u32 s{S_G}, s{S_G}, s{S_J}\ns_lshl_b32 s{S_G}, s{S_G}, 2\ns_add_u32 s{S_G}, s{S_G}, s{S_W}\ns_lshl_b32 s{S_G}, s{S_G}, 12")
        a(f"s_add_u32 s{S_G}, s{S_G}, {WS_DBG}\nv_lshlrev_b32 v{vStampA}, 2, v0\nv_add_u32 v{vStampA}, s{S_G}, v{vStampA}")
        a(f"v_cmp_gt_u32 vcc, 16, v0\nv_mov_b32 v{vT3}, {OOB}\nv_cndmask_b32 v{vStampA}, v{vT3}, v{vStampA}, vcc\nv_mov_b32 v{vStamp}, 0")
    a(f"s_mov_b32 s{sS}, 0\ns_mov_b32 s{sKV}, 0\ns_mov_b32 s{sSeg}, 0")
    for w in (1, 2, 3): a(f"s_cmp_eq_u32 s{S_W}, {w}\ns_cbranch_scc1 L_rec_w{w}")

    NST = 8
    STN = o.get('stn', ['top', 'qk', 'B1', 'Sst', 'Sok', 'B3', 'wo', 'B4'])
    def stamp(name):
        if stamps and name in STN:
            k = STN.index(name); a(f"s_memtime s[{sStamp+2*k}:{sStamp+2*k+1}]")
        if stamps and 'R' + name in STN:
            k = STN.index('R' + name); a(f"s_memrealtime s[{sStamp+2*k}:{sStamp+2*k+1}]")
    def flush_stamps():
        if not stamps: return
        a("s_waitcnt lgkmcnt(0)")
        for k in range(NST): a(f"v_writelane_b32 v{vStamp}, s{sStamp+2*k}, {k}")
        a(f"v_writelane_b32 v{vStamp}, s{S_BUD}, 15")
        a(f"s_lshl_b32 s{S_G}, s{sS}, 6\nbuffer_store_dword v{vStamp}, v{vStampA}, {WS}, s{S_G} offen")

    def smf(acc, t, blk, tile):
        w = wreg(blk, t, tile)
        a(f"v_smfmac_f32_16x16x64_bf16 v[{acc}:{acc+3}], v[{vA+4*t}:{vA+4*t+3}], a[{w}:{w+7}], v{vIdx}")
    def mfma(d, A, B, c0=False):
        a(f"v_mfma_f32_16x16x32_bf16 v[{d}:{d+3}], v[{A}:{A+3}], v[{B}:{B+3}], " + ("0" if c0 else f"v[{d}:{d+3}]"))
    def cvt(d, s0, s1): a(f"v_cvt_pk_bf16_f32 v{d}, v{s0}, v{s1}")

    def nops(n):
        while n > 0:
            k = min(n, 16); a(f"s_nop {k-1}"); n -= k

    sD = S_G + 2
    def gather(sOff, work, tails, delay, nm, split, shadow=None):
        nops(delay)
        stamp(nm + 'ld')
        ld = lambda t: f"buffer_load_dwordx4 v[{vA+4*t}:{vA+4*t+3}], v{vLdAx[t]}, {WS}, s{sOff} offen sc1"
        for t in range(4):
            a(ld(t))
            if t < 3: nops(GAP)
        ent = [a.label('ge') for _ in range(4)]; blk = [a.label('gb') for _ in range(4)]; fin = a.label('gx'); p2 = a.label('gp')
        def chk(t, st=True):
            a(f"s_waitcnt vmcnt({3-t})")
            if st: stamp(nm + str(t))
            a(f"v_cmp_eq_u32 vcc, -1, v{vA+4*t}")
        if shadow: shadow()
        chk(0)
        for t in range(4):
            a(f"{blk[t]}:")
            a(f"s_cbranch_vccnz {ent[t]}")
            ws = work(t)
            if t < 3:
                for f in ws[:split]: f()
                chk(t + 1)
                for f in ws[split:]: f()
            else:
                for f in ws: f()
        a(f"{fin}:")
        def slow():
            sb = [a.label('gs') for _ in range(4)]
            for t in range(4):
                a(f"{ent[t]}:")
                if t:
                    a("s_mov_b64 exec, 1")
                    for u in range(t): a(ld(u))
                a(f"s_mov_b64 exec, vcc\n{ld(t)}\ns_mov_b64 exec, -1\ns_mov_b32 s{sD}, {(1 << t) - 1}")
                if t < 3: a(f"s_branch {sb[t+1]}")
            for t in range(4):
                nx = a.label('gn')
                a(f"{sb[t]}:")
                a(f"s_waitcnt vmcnt(3)\nv_cmp_eq_u32 vcc, -1, v{vA+4*t}\ns_bitcmp1_b32 s{sD}, {t}\ns_cbranch_scc1 {nx}\ns_cbranch_vccnz {nx}")
                ws = work(t)
                ws[0]()
                a(f"s_bitset1_b32 s{sD}, {t}\ns_cmp_eq_u32 s{sD}, 15")
                for f in ws[1:]: f()
                a(f"s_cbranch_scc1 {fin}")
                a(f"{nx}:")
                a(f"s_or_b64 exec, vcc, 1\n{ld(t)}\ns_mov_b64 exec, -1")
            a(f"s_sub_u32 s{S_BUD}, s{S_BUD}, 1\ns_cbranch_scc0 {sb[0]}\ns_branch L_abort")
        tails.append(slow)

    def kv_check(tails):
        lp = a.label('kvp'); lo = a.label('kvo')
        a(f"s_lshr_b32 s{S_G}, s{sSeg}, 18\nv_readfirstlane_b32 s{sKV}, v{vFl}")
        a(f"s_cmp_le_u32 s{sKV}, s{S_G}\ns_cbranch_scc1 {lp}")
        a(f"{lo}:")
        tails.append(f"{lp}:\nbuffer_load_dword v{vFl}, v{vFlA}, {WS}, 0 offen sc1\ns_sub_u32 s{S_BUD}, s{S_BUD}, 1\ns_cbranch_scc1 L_abort\n"
                     f"s_waitcnt vmcnt(0)\nv_readfirstlane_b32 s{sKV}, v{vFl}\ns_nop 0\ns_cmp_le_u32 s{sKV}, s{S_G}\ns_cbranch_scc1 {lp}\ns_branch {lo}")
    def kv_load(vLd, step):
        for t in range(2):
            a(f"buffer_load_dwordx4 v[{vKx[t]}:{vKx[t]+3}], v{vLd}, {WS}, s{sSeg} offen offset:{step*t} sc1")
        a(f"buffer_load_dword v{vFl}, v{vFlA}, {WS}, 0 offen sc1")
        a(f"s_add_u32 s{sSeg}, s{sSeg}, 0x40000")

    sSlOld = S_G + 1
    def slots():
        for f in [f"s_and_b32 s{S_G}, s{sS}, 3", f"s_lshl_b32 s{sSlS}, s{S_G}, 18", f"s_lshl_b32 s{sSlO}, s{S_G}, 17",
                  f"s_xor_b32 s{sPz}, s{sSlO}, 0x40000", f"s_xor_b32 s{sPzS}, s{sSlS}, 0x80000",
                  f"s_add_u32 s{sSlAn}, s{sSlO}, 0x20000", f"s_and_b32 s{sSlAn}, s{sSlAn}, 0x60000",
                  f"s_and_b32 s{sSlC}, s{sSlS}, 0x40000", f"s_add_u32 s{sSlC}, s{sSlC}, s{S_PAR}", f"s_lshr_b32 s{sTag}, s{S_G}, 1",
                  f"s_add_u32 s{sSlOld}, s{sSlO}, 128", f"s_add_u32 s{S_G}, s{sS}, 1", f"v_mov_b32 v{vStep}, s{S_G}"]: a(f)
    def zero(rs):
        for r in rs:
            for i in range(4): a(f"v_mov_b32 v{r+i}, 0")
    def pk(op, d, x, y, mods=""): a(f"v_pk_{op}_f32 v[{d}:{d+1}], v[{x}:{x+1}], v[{y}:{y+1}] {mods}")
    def eflag_wait(vAddr, vE, depth, pace, off=0):
        lp = a.label('ep')
        a(f"{lp}:")
        a(f"buffer_load_dword v{vE}, v{vAddr}, {WS}, 0 offen offset:{off} sc1")
        nops(pace)
        a(f"s_waitcnt vmcnt({depth})\nv_cmp_ge_u32 vcc, s{sS}, v{vE}\ns_sub_u32 s{S_BUD}, s{S_BUD}, 1\ns_cbranch_scc1 L_abort\ns_cbranch_vccnz {lp}")
    def kvm_store():
        a(f"buffer_store_dwordx4 v[{vOut}:{vOut+3}], v{vStKVM}, {WS}, s{S_G} offen sc1")
        a(f"buffer_store_dword v{vT0}, v{vFlM}, {WS}, 0 offen sc1")

    BGE = o.get('bge', 1)
    def background(w):
        if o.get('nokv'): return
        if w == 0: kv_load(vLdK[0], 128)
        if w == 2: kv_load(vLdV[0], 64)
        if w == 3: kvm_store()
    for w in range(4):
        tails = []
        a(f"L_rec_w{w}:")
        if w in (0, 2):
            a(f"v_mov_b32 v{vFl}, 0")
            kv_check(tails); kv_load(vLdK[0] if w == 0 else vLdV[0], 128 if w == 0 else 64)
        if w == 2:
            zero([vVm[0], vVm[1], vPm])
            a(f"v_mov_b32 v{vMx}, s{sScale}\nv_mov_b32 v{vMx+1}, s{sScale}")
        zero(aQ + aK + aV + aW + [vEp])
        slots()
        a(f"s_mov_b32 s{sSlA}, 0")
        a(".p2align 6")
        a(f"L_rec_loop{w}:")
        a("s_barrier")
        stamp('top')
        workA = lambda t: [lambda: smf(aQ[0], t, 0, 0), lambda: smf(aK[0], t, 1, 0), lambda: smf(aQ[1], t, 0, 1), lambda: smf(aK[1], t, 1, 1)]
        gather(sSlA, workA, tails, o.get('adelay', 44), 'A', 2)
        stamp('qk')
        vs = [(aV[tile], t, 2, tile) for t in range(4) for tile in range(2)]
        for tile in range(2):
            cvt(vP[tile], aQ[tile], aQ[tile] + 1); cvt(vP[tile] + 1, aQ[tile] + 2, aQ[tile] + 3)
            cvt(vP[tile] + 2, aK[tile], aK[tile] + 1); cvt(vP[tile] + 3, aK[tile] + 2, aK[tile] + 3)
            if w: a(f"ds_write_b128 v{vL16}, v[{vP[tile]}:{vP[tile]+3}] offset:{w*2048 + tile*1024}")
            elif tile == 0: smf(*vs.pop(0))
        def vpart():
            for tile in range(2):
                cvt(vP[0] + 2 * tile, aV[tile], aV[tile] + 1); cvt(vP[0] + 2 * tile + 1, aV[tile] + 2, aV[tile] + 3)
            a(f"ds_write2st64_b64 v{vVpW}, v[{vP[0]}:{vP[0]+1}], v[{vP[0]+2}:{vP[0]+3}] offset0:0 offset1:4")
        if w:
            for _ in range(3): smf(*vs.pop(0))
            a("s_waitcnt lgkmcnt(0)\ns_barrier")
            if w == 3:
                if ES: a(f"buffer_store_dword v{vStep}, v{vEsS if ES == 1 else vEoS}, {WS}, 0 offen")
            while vs: smf(*vs.pop(0))
            vpart()
            if w == 1: slots()
            if w == 2 and ES: eflag_wait(vEsL if ES == 1 else vEoL, vEp, o.get('edepth', 8), o.get('epace', 0))
            a("s_waitcnt lgkmcnt(0)\ns_barrier")
            stamp('B2')
        else:
            mfma(vF2[0], vP[0], vSel, True); mfma(vF2[1], vP[1], vSel, True)
            for _ in range(4): smf(*vs.pop(0))
            a("s_barrier")
            stamp('B1')
            for i in range(6):
                a(f"ds_read_b128 v[{vR+4*i}:{vR+4*i+3}], v{vL16} offset:{2048 + 1024*i}")
                if i in (0, 2, 4): smf(*vs.pop(0))
            assert not vs
            for i in range(6):
                a(f"s_waitcnt lgkmcnt({5-i})")
                mfma(vF2[i & 1], vR + 4 * i, vSel)
                if i in (2, 3):
                    tile = i - 2
                    cvt(vP[0] + 2 * tile, aV[tile], aV[tile] + 1); cvt(vP[0] + 2 * tile + 1, aV[tile] + 2, aV[tile] + 3)
            a(f"ds_write2st64_b64 v{vVpW}, v[{vP[0]}:{vP[0]+1}], v[{vP[0]+2}:{vP[0]+3}] offset0:0 offset1:4")
            cvt(vF, vF2[0], vF2[0] + 1); cvt(vF + 1, vF2[0] + 2, vF2[0] + 3); cvt(vF + 2, vF2[1], vF2[1] + 1); cvt(vF + 3, vF2[1] + 2, vF2[1] + 3)
            mfma(vTx[0], vKx[0], vF, True); mfma(vTx[1], vKx[1], vF, True)
            a("s_waitcnt lgkmcnt(0)")
            mfma(vTm, vF, vF, True)
            a(f"buffer_store_dwordx4 v[{vTx[0]}:{vTx[0]+3}], v{vStX}, {WS}, s{sSlS} offen")
            a(f"buffer_store_dwordx4 v[{vTx[1]}:{vTx[1]+3}], v{vStX}, {WS}, s{sSlS} offen offset:128")
            a(f"buffer_store_dwordx4 v[{vTm}:{vTm+3}], v{vStM}, {WS}, s{sSlS} offen")
            stamp('Sst')
            a("s_barrier")
            a(f"ds_write_b128 v{vL16}, v[{vF}:{vF+3}] offset:{KVM - LDS_MISC}")
        if w != 2:
            a(f"s_cmp_eq_u32 s{sS}, 63\ns_cbranch_scc1 L_rec_fin{w}")
            zero(aQ + aK + aV)
            if w == 1: zero(aW)
            if w == 3 and EO:
                nops(o.get('eodelay', 40))
                eflag_wait(vEoL, vEp, o.get('edepth', 8), o.get('epace', 0))
                stamp('Eo')
            a("s_waitcnt lgkmcnt(0)\ns_barrier")
        else:
            def sloads():
                s = ""
                for c in range(4):
                    s += f"buffer_load_dwordx4 v[{vSX+4*c}:{vSX+4*c+3}], v{vLdX}, {WS}, s{sSlS} offen offset:{1024*c} sc1\n"
                    if c == 1:
                        for cc in range(4):
                            s += f"buffer_load_dword v{vSM+cc}, v{vLdM}, {WS}, s{sSlS} offen offset:{256*cc} sc1\n"
                return s
            for i in range(4):
                a(f"ds_read_b128 v[{vR+4*i}:{vR+4*i+3}], v{vL16} offset:{VP - LDS_MISC + 1024*i}")
            SD = o.get('ssets', 1)
            nops(o.get('sdelay', 6))
            stamp('Sld')
            a(sloads())
            for i in range(4):
                a(f"s_waitcnt lgkmcnt({3-i})")
                mfma(vVr[i >> 1], vSelV, vR + 4 * i, c0=(i & 1) == 0)
            if SD >= 3: a(sloads())
            for tile in range(2):
                cvt(vVm[tile], vVr[tile], vVr[tile] + 1)
                a(f"ds_write_b32 v{vVmW}, v{vVm[tile]} offset:{64*tile}")
            a(f"s_cmp_eq_u32 s{sS}, 63\ns_cbranch_scc1 L_rec_fin2")
            if SD >= 2:
                nops(o.get('sgap', 0)); a(sloads())
            ls = a.label('sw'); lr = a.label('srt'); lk = a.label('sok')
            a(f"{ls}:")
            t0, t1 = vTx[0], vTx[1]
            X = 8 * (SD - 1)
            a(f"s_waitcnt vmcnt({6+X})")
            stamp('S2')
            for i in (0, 2): pk('add', t0 + i, vSX + i, vSX + 4 + i)
            for i in (0, 2): pk('mul', t0 + i, t0 + i, vMx)
            a(f"s_waitcnt vmcnt({2+X})")
            pk('add', vTm, vSM, vSM + 2)
            a(f"v_add_f32 v{vTm}, v{vTm}, v{vTm+1}\nv_mul_f32 v{vTm}, s{sScale}, v{vTm}")
            a(f"s_waitcnt vmcnt({1+X})")
            for i in (0, 2): a(f"v_pk_fma_f32 v[{t0+i}:{t0+i+1}], v[{vSX+8+i}:{vSX+9+i}], v[{vMx}:{vMx+1}], v[{t0+i}:{t0+i+1}]")
            a(f"s_waitcnt vmcnt({X})")
            stamp('S8')
            for i in (0, 2): a(f"v_pk_fma_f32 v[{t0+i}:{t0+i+1}], v[{vSX+12+i}:{vSX+13+i}], v[{vMx}:{vMx+1}], v[{t0+i}:{t0+i+1}]")
            D = "row_mask:0xf bank_mask:0xf"
            a(f"v_maximum3_f32 v{vL}, v{t0}, v{t0+1}, v{vTm}")
            a(f"v_maximum3_f32 v{vL}, v{vL}, v{t0+2}, v{t0+3}")
            a(f"v_cmp_u_f32 vcc, v{vL}, v{vL}")
            a(f"v_max_f32_dpp v{vL}, v{vL}, v{vL} row_ror:8 {D}")
            a(f"v_mov_b32 v{vT1}, v{vL}\nv_permlane16_swap_b32 v{vL}, v{vT1}\nv_max_f32 v{vL}, v{vL}, v{vT1}")
            a(f"v_mov_b32 v{vT1}, v{vL}")
            a(f"s_cbranch_vccnz {lr}")
            a(f"{lk}:")
            if EO: a(f"buffer_store_dword v{vStep}, v{vEoS}, {WS}, 0 offen")
            tails.append(f"{lr}:\n" + sloads() + f"s_sub_u32 s{S_BUD}, s{S_BUD}, 1\ns_cbranch_scc0 {ls}\ns_branch L_abort")
            a(f"v_permlane32_swap_b32 v{vL}, v{vT1}\nv_max_f32 v{vL}, v{vL}, v{vT1}")
            stamp('Sok')
            for i in (0, 2): pk('add', t0 + i, t0 + i, vL, "op_sel_hi:[1,0] neg_lo:[0,1] neg_hi:[0,1]")
            a(f"v_sub_f32 v{vTm}, v{vTm}, v{vL}")
            for r in (t0, t0 + 1, t0 + 2, t0 + 3): a(f"v_exp_f32 v{r}, v{r}")
            cvt(vPf, t0, t0 + 1)
            a(f"v_exp_f32 v{vTm}, v{vTm}")
            cvt(vPf + 1, t0 + 2, t0 + 3)
            a(f"v_mov_b32_dpp v{vPf+2}, v{vPf} row_ror:8 {D}")
            a(f"v_mov_b32_dpp v{vT1}, v{vTm} row_ror:8 {D}")
            a(f"v_mov_b32_dpp v{vPf+3}, v{vPf+1} row_ror:8 {D}")
            cvt(vPm, vTm, vT1)
            mfma(vL, vOnes, vPf, True); mfma(vL, vOnes, vPm)
            mfma(vO[0], vVx[0], vPf, True); mfma(vO[0], vVm[0], vPm)
            mfma(vO[1], vVx[1], vPf, True)
            a(f"v_rcp_f32 v{vL}, v{vL}")
            mfma(vO[1], vVm[1], vPm)
            for tile in range(2):
                for i in (0, 2): pk('mul', vO[tile] + i, vO[tile] + i, vL, "op_sel_hi:[1,0]")
                cvt(vOut + 2 * tile, vO[tile], vO[tile] + 1); cvt(vOut + 2 * tile + 1, vO[tile] + 2, vO[tile] + 3)
            a(f"buffer_store_dwordx4 v[{vOut}:{vOut+3}], v{vStO}, {WS}, s{sSlOld} offen")
            stamp('Ost')
            a("s_waitcnt lgkmcnt(0)\ns_barrier")
        stamp('B3')
        workO = lambda t: [lambda: smf(aW[0], t, 3, 0), lambda: smf(aW[1], t, 3, 1)]
        def shadowO():
            if w in (0, 2) and not o.get('nokv'): kv_check(tails)
            if w == 3: a(f"ds_read_b128 v[{vOut}:{vOut+3}], v{vKvmR}\nv_mov_b32 v{vT0}, s{sS}\ns_lshl_b32 s{S_G}, s{sS}, 17\ns_waitcnt lgkmcnt(0)")
        gather(sSlOld, workO, tails, o.get('odelay', 28), 'O', o.get('osplit', 1), shadowO)
        stamp('wo')
        for tile in range(2):
            cvt(vP[0] + 2 * tile, aW[tile], aW[tile] + 1); cvt(vP[0] + 2 * tile + 1, aW[tile] + 2, aW[tile] + 3)
        if w != 1:
            a(f"ds_write_b128 v{vL16}, v[{vP[0]}:{vP[0]+3}] offset:{WP - LDS_MISC + 1024*w}")
            if BGE: background(w)
            a("s_waitcnt lgkmcnt(0)\ns_barrier")
            if w == 0 and EC:
                for k in range(1, 4): a(f"s_atomic_add s{sOne}, s[{P_WSP}:{P_WSP+1}], s{sFc+k}")
            if not BGE: background(w)
            stamp('B4')
            zero(aW)
            if w == 2: zero(aQ + aK + aV)
            if w == 0: tl(a, 16, sS)
            if w == 3:
                nops(o.get('pzdelay', 32))
                a(f"buffer_store_dwordx4 v[{vPoison}:{vPoison+3}], v{vPzA}, {WS}, s{sPz} offen")
                a(f"buffer_store_dwordx4 v[{vPoison}:{vPoison+3}], v{vPzS}, {WS}, s{sPzS} offen")
                a(f"buffer_store_dwordx4 v[{vPoison}:{vPoison+3}], v{vStM}, {WS}, s{sPzS} offen")
            flush_stamps()
            a(f"s_mov_b32 s{sSlA}, s{sSlAn}\ns_add_u32 s{sS}, s{sS}, 1")
            slots()
            if w == 3 and EA:
                nops(o.get('eapd', 100))
                eflag_wait(vEoL, vEp + 1, o.get('edepth', 8), o.get('epace', 0), 128)
                stamp('Ea')
        else:
            mfma(vF2[0], vP[0], vSelW, True)
            a("s_barrier")
            stamp('B4')
            for i, ww in enumerate((0, 2, 3)):
                a(f"ds_read_b128 v[{vR+4*i}:{vR+4*i+3}], v{vL16} offset:{WP - LDS_MISC + 1024*ww}")
            for i in range(3):
                a(f"s_waitcnt lgkmcnt({2-i})")
                mfma(vF2[0], vR + 4 * i, vSelW)
            a(f"v_and_or_b32 v{vF2[0]}, v{vF2[0]}, -2, s{sTag}")
            a(f"buffer_store_dwordx4 v[{vF2[0]}:{vF2[0]+3}], v{vStC}, {WS}, s{sSlC} offen sc1")
            stamp('Cst')
            flush_stamps()
            a(f"s_mov_b32 s{sSlA}, s{sSlAn}\ns_add_u32 s{sS}, s{sS}, 1")
            def cl(st):
                return "\n".join(f"buffer_load_dwordx4 v[{vC+12*st+4*k}:{vC+12*st+4*k+3}], v{vLdC[k]}, {WS}, s{sSlC} offen {o.get('cflav', 'sc1')}" for k in range(3))
            if EC:
                lp = a.label('ec')
                a(f"s_add_u32 s{sTgt}, s{sTgt}, 3\nv_add_u32 v{vStep}, 1, v{vStep}")
                a(f"{lp}:")
                a(f"s_load_dword s{sCnt}, s[{P_WSP}:{P_WSP+1}], s{sFc} glc")
                nops(o.get('ecpace', 4))
                a(f"s_sub_u32 s{S_BUD}, s{S_BUD}, 1\ns_cbranch_scc1 L_abort\ns_cmp_lt_u32 s{sCnt}, s{sTgt}\ns_cbranch_scc1 {lp}")
                stamp('Ec')
            nops(o.get('cdelay', 64))
            stamp('Cld')
            for st in range(NS):
                a(cl(st))
                if st < NS - 1: nops(o.get('cgap', 42))
            if EA:
                assert NS == 1
                nops(o.get('easd', 60))
                a(f"buffer_store_dword v{vStep}, v{vEoS}, {WS}, 0 offen offset:128")
            lp = a.label('cp'); done = a.label('cd')
            if EA: a("s_waitcnt vmcnt(1)")
            a(f"{lp}:")
            for st in range(NS):
                b = vC + 12 * st
                if not EA: a(f"s_waitcnt vmcnt({3*(NS-1)})")
                a(f"v_bitop3_b32 v{vT0}, v{b}, v{b+4}, v{vF2[0]} bitop3:0x7e")
                a(f"v_bitop3_b32 v{vT0}, v{vT0}, v{b+8}, v{vF2[0]} bitop3:0xf6")
                a(f"v_and_b32 v{vT0}, 1, v{vT0}\nv_cmp_ne_u32 vcc, 0, v{vT0}")
                for i in (0, 2): pk('add', vF2[1] + i, vF2[0] + i, b + i)
                for i in (0, 2): pk('add', vP[1] + i, b + 4 + i, b + 8 + i)
                for i in (0, 2): pk('add', vF2[1] + i, vF2[1] + i, vP[1] + i)
                a(f"s_cbranch_vccz {done}")
                a(cl(st))
                nops(o.get('cpace', 0))
                if EA: a("s_waitcnt vmcnt(0)")
            a(f"s_sub_u32 s{S_BUD}, s{S_BUD}, 1\ns_cbranch_scc0 {lp}\ns_branch L_abort")
            a(f"{done}:")
            cvt(vOut, vF2[1], vF2[1] + 1); cvt(vOut + 1, vF2[1] + 2, vF2[1] + 3)
            a(f"buffer_store_dwordx2 v[{vOut}:{vOut+1}], v{vStA}, {WS}, s{sSlA} offen")
            stamp('Ast')
        a(f"s_branch L_rec_loop{w}")
        a(f"L_rec_fin{w}:")
        if w == 3: a(f"v_mov_b32 v{vT0}, 63\nbuffer_store_dword v{vT0}, v{vFlM}, {WS}, 0 offen sc1")
        a("s_waitcnt lgkmcnt(0)\ns_barrier")
        if w == 3:
            a(f"ds_read_b128 v[{vF2[0]}:{vF2[0]+3}], v{vKvmR}\ns_lshl_b32 s{S_G}, s{sS}, 17\ns_waitcnt lgkmcnt(0)")
            a(f"buffer_store_dwordx4 v[{vF2[0]}:{vF2[0]+3}], v{vStKVM}, {WS}, s{S_G} offen sc1")
            a(f"v_mov_b32 v{vT1}, 64\ns_waitcnt vmcnt(0)\nbuffer_store_dword v{vT1}, v{vFlM}, {WS}, 0 offen sc1")
        a("s_branch L_drain")
        for t in tails:
            if callable(t): t()
            else: a(t)
```

```python
from common import *
import math

WS = f"s[{S_WS}:{S_WS+3}]"
SX = f"s[{S_T}:{S_T+3}]"
sS, sRow, sM0, sSrc, sK, sT0, sT1, sT2 = range(S_G + 4, S_G + 12)
sKey = S_G + 12
D = 8
NORD = dict(on=False)
LOG2E = math.log2(math.e)

def cvt(a, d, s0, s1): a(f"v_cvt_pk_bf16_f32 v{d}, v{s0}, v{s1}")
def pk(a, op, d, x, y, mods=""): a(f"v_pk_{op}_f32 v[{d}:{d+1}], v[{x}:{x+1}], v[{y}:{y+1}] {mods}")
def m32(a, d, A, B, c): a(f"v_mfma_f32_32x32x16_bf16 v[{d}:{d+15}], {A}, {B}, {c}")

def lane1(a, vd, s, vt):
    a(f"v_mov_b32 v{vd}, s{s}\nv_cmp_eq_u32 vcc, 0, v0\nv_mov_b32 v{vt}, {OOB}\nv_cndmask_b32 v{vd}, v{vt}, v{vd}, vcc")

def poll(a, vA, vD, sThr, sleep=2):
    lp = a.label('pl'); ok = a.label('pk')
    a(f"{lp}:")
    a(f"buffer_load_dword v{vD}, v{vA}, {WS}, 0 offen sc1\ns_waitcnt vmcnt(0)")
    a(f"v_cmp_ge_u32 vcc, {sThr}, v{vD}\ns_cbranch_vccz {ok}")
    a(f"s_sleep {sleep}\ns_sub_u32 s{S_BUD}, s{S_BUD}, 1\ns_cbranch_scc0 {lp}\ns_branch L_abort")
    a(f"{ok}:")

class Gemm:
    def __init__(self, a, V, otype, o):
        self.a = a; self.otype = otype; self.DS = o.get('dso', 2) if otype else o.get('ds', 3)
        self.vW = V(); self.vSrc = V(); self.vT = V(); self.vU = V(); self.vPf = V(); self.vJ = V()
        self.vRd = [V(), V()]
        self.acc = V(16, 4)
    def weights(self, ptr, pitch_log2, after_first, sKq=None):
        a = self.a; vT, vU = self.vT, self.vU; vTr = self.vRd
        srd(a, S_B0, ptr, 8 << 20)
        a(f"v_lshrrev_b32 v{vT}, 2, v0\nv_and_b32 v{self.vW}, 3, v0\nv_lshlrev_b32 v{self.vW}, 4, v{self.vW}\nv_lshl_add_u32 v{self.vW}, v{vT}, {pitch_log2}, v{self.vW}")
        a(f"v_bfe_u32 v{vU}, v0, 2, 2\ns_lshl_b32 s{S_G}, s{S_W}, 15")
        if self.otype:
            a(f"v_lshrrev_b32 v{vT}, 5, v0\nv_lshl_add_u32 v{vU}, v{vT}, 4, v{vU}\nv_bfe_u32 v{vT}, v0, 4, 1\nv_lshl_add_u32 v{vU}, v{vT}, 2, v{vU}\nv_lshlrev_b32 v{vU}, 6, v{vU}")
            a(f"v_and_b32 v{vT}, 3, v0\nv_lshl_add_u32 v{vU}, v{vT}, 3, v{vU}\ns_and_b32 s{S_G+1}, s{sKq}, 1\ns_lshl_b32 s{S_G+1}, s{S_G+1}, 5\ns_add_u32 s{S_G}, s{S_G}, s{S_G+1}")
            a(f"v_add_u32 v{vTr[0]}, s{S_G}, v{vU}\nv_xor_b32 v{vTr[1]}, 32, v{vTr[0]}")
        else:
            a(f"v_lshrrev_b32 v{vT}, 4, v0\nv_lshl_add_u32 v{vU}, v{vT}, 3, v{vU}\nv_lshlrev_b32 v{vU}, 6, v{vU}")
            a(f"v_bfe_u32 v{vT}, v0, 1, 1\nv_lshl_add_u32 v{vU}, v{vT}, 5, v{vU}\nv_and_b32 v{vT}, 1, v0\nv_lshl_add_u32 v{vU}, v{vT}, 3, v{vU}")
            a(f"v_add_u32 v{vTr[0]}, s{S_G}, v{vU}\nv_add_u32 v{vTr[1]}, 16, v{vTr[0]}")
        src = lambda ch: (S_B0, self.vW, sRow, [(128 * ch + 16 * i) << pitch_log2 for i in range(8)])
        tr = lambda ch: [(8 * (4 * ch + kk) + 4 * q + 2 * p, vTr[q], (32 * kk + (8 if self.otype else 4) * p) * 64)
                         for kk in range(4) for q in range(2) for p in range(2)]
        load_weights(a, 8, src, tr, after_first=after_first)
    def granule(self, vd):
        a = self.a; vT = self.vT
        a(f"v_and_b32 v{vd}, 7, v0\nv_lshlrev_b32 v{vd}, 4, v{vd}\nv_lshrrev_b32 v{vT}, 3, v0\nv_lshl_add_u32 v{vd}, v{vT}, 8, v{vd}")
    def addrs(self, sKq=None):
        a = self.a; vT, vU = self.vT, self.vU
        if self.otype:
            a(f"v_lshlrev_b32 v{vT}, 4, v0\ns_lshl_b32 s{S_G}, s{S_W}, 10\nv_add_u32 v{self.vSrc}, s{S_G}, v{vT}")
            a(f"v_and_b32 v{vT}, 15, v0\nv_lshlrev_b32 v{vT}, 4, v{vT}\nv_lshrrev_b32 v{vU}, 4, v0\nv_lshl_add_u32 v{vT}, v{vU}, 9, v{vT}")
            a(f"s_lshr_b32 s{S_G}, s{sKq}, 1\ns_lshl_b32 s{S_G}, s{S_G}, 8\nv_add_u32 v{self.vRd[0]}, s{S_G}, v{vT}\nv_xor_b32 v{self.vRd[1]}, 256, v{self.vRd[0]}")
        else:
            a(f"v_lshrrev_b32 v{vT}, 3, v0\ns_lshl_b32 s{S_G}, s{S_W}, 3\nv_add_u32 v{vT}, s{S_G}, v{vT}")
            a(f"s_lshr_b32 s{S_G}, s{S_W}, 1\ns_lshl_b32 s{S_G}, s{S_G}, 2\nv_lshrrev_b32 v{vU}, 4, v0\nv_or_b32 v{vU}, s{S_G}, v{vU}\nv_xor_b32 v{vU}, v{vU}, v0")
            a(f"v_and_b32 v{vU}, 7, v{vU}\nv_lshlrev_b32 v{vU}, 4, v{vU}\nv_lshl_add_u32 v{self.vSrc}, v{vT}, 11, v{vU}")
            a(f"v_bfe_u32 v{vT}, v0, 1, 3\nv_lshrrev_b32 v{vU}, 4, v0\nv_xor_b32 v{vT}, v{vT}, v{vU}\nv_lshlrev_b32 v{vT}, 4, v{vT}")
            a(f"v_and_b32 v{vU}, 7, v0\nv_lshl_add_u32 v{vT}, v{vU}, 7, v{vT}\nv_bfe_u32 v{vU}, v0, 3, 1\nv_lshl_add_u32 v{self.vRd[0]}, v{vU}, 11, v{vT}")
            a(f"v_xor_b32 v{self.vRd[1]}, 64, v{self.vRd[0]}")
            a(f"s_lshl_b32 s{S_G}, s{S_J}, 11\ns_lshl_b32 s{S_G+1}, s{S_W}, 9\ns_add_u32 s{S_G}, s{S_G}, s{S_G+1}\ns_add_u32 s{S_G}, s{S_G}, 0x20000")
            a(f"v_and_b32 v{vU}, 7, v0\nv_lshlrev_b32 v{vU}, 6, v{vU}\nv_add_u32 v{self.vPf}, s{S_G}, v{vU}")
        a(f"s_lshl_b32 s{sM0}, s{S_W}, 10")
    def warm(self): return f"buffer_load_dword v{self.vJ}, v{self.vPf}, {SX}, s{sSrc} offen"
    def dma(self, sFrom=None):
        out = []
        for i in range(16):
            if self.otype:
                g = (f"s_mov_b32 m0, s{sM0}\ns_mov_b32 s{sK}, s{sFrom or sSrc}" if i == 0 else f"s_add_u32 m0, m0, 4096\ns_add_u32 s{sK}, s{sK}, 4096")
                out.append((g, f"buffer_load_dwordx4 v{self.vSrc}, {WS}, s{sK} offen sc1 lds"))
            else:
                g = (f"s_mov_b32 m0, s{sM0}" if i == 0 else "s_add_u32 m0, m0, 3968")
                out.append((g, f"buffer_load_dwordx4 v{self.vSrc}, {SX}, s{sSrc} offen offset:{128*i} lds"))
        return out
    def dma_now(self):
        for g, l in self.dma(): self.a(g); self.a(l)
    def dma_hooks(self, sFrom=None):
        h = {}
        for i, (g, l) in enumerate(self.dma(sFrom)):
            h.setdefault(i * self.DS, []).append(g); h.setdefault(i * self.DS + 1, []).append(l)
        return h
    def ndma(self, t): return len([i for i in range(16) if i * self.DS + 1 <= t])
    def compute(self, ring, swap, hooks):
        a = self.a
        def rd(t):
            k, tt = t >> 1, t & 1
            v, off = (self.vRd[tt], k * 2048) if self.otype else (self.vRd[k & 1], (k >> 1) * 4096 + tt * 1024)
            a(f"ds_read_b128 v[{ring+4*(t%D)}:{ring+4*(t%D)+3}], v{v} offset:{off}")
        for t in range(D - 1): rd(t)
        for t in range(64):
            if t % 2 == 0: a(f"s_waitcnt lgkmcnt({min(D - 3, 62 - t)})")
            X = f"v[{ring+4*(t%D)}:{ring+4*(t%D)+3}]"
            for q in range(2):
                W = f"a[{8*(t>>1)+4*q}:{8*(t>>1)+4*q+3}]"
                d = self.acc + (8 * q + 4 * (t & 1) if swap else 8 * (t & 1) + 4 * q)
                a(f"v_mfma_f32_16x16x32_bf16 v[{d}:{d+3}], {X if swap else W}, {W if swap else X}, " + ("0" if t < 2 else f"v[{d}:{d+3}]"))
                if q == 0 and t + D - 1 < 64: rd(t + D - 1)
            for h in hooks.get(t, []): a(h)
    def toggle_read(self):
        for k in range(2): self.a(f"v_xor_b32 v{self.vRd[k]}, 0x10000, v{self.vRd[k]}")

def addh(h, t, s): h.setdefault(t, []).append(s)

def gen_kv(a, o):
    V = VAlloc(1); g = Gemm(a, V, False, dict(o, ds=2))
    ring = V(4 * D, 4); vP = V(8, 4); vSt = V(); vFl = V(); vVal = V(); vFy = V(); vFz = V()
    vMW = V(); vMW2 = V(); vSw = V(); vTr = V(4); vT = V(); vU = V(); vIdx = V(); vL16 = V(); vYs = V()
    vX = V(20, 4); acc = V(16, 4); vG = V(16, 4); vB = V(32, 4)
    sMo, sMs, sMu, sPh, sNph, sYo, sMl, sLeft = range(sKey, sKey + 8)
    STG = LDS_MISC; S0 = o.get('moe0', 14); MS = o.get('ms', 2); NT = 'nt' if o.get('nt', 16) & 16 else ''
    a("L_kv:")
    a(f"s_and_b32 s{sT0}, s{S_X}, 1")
    a(f"s_lshl_b32 s{S_G}, s{S_J}, 7\ns_lshl_b32 s{S_G+1}, s{S_W}, 3\ns_add_u32 s{S_G}, s{S_G}, s{S_G+1}\ns_lshl_b32 s{S_G+1}, s{sT0}, 2\ns_add_u32 s{S_G}, s{S_G}, s{S_G+1}\ns_add_u32 s{S_G}, s{S_G}, {FL_KV}")
    lane1(a, vFl, S_G, g.vT)
    a(f"s_mul_i32 s{sT1}, s{sT0}, 28\ns_add_u32 s{sT1}, s{sT1}, s{S_J}\ns_lshl_b32 s{S_G}, s{sT1}, 2\ns_lshl_b32 s{S_G+1}, s{S_W}, 8\ns_add_u32 s{S_G}, s{S_G}, s{S_G+1}\ns_add_u32 s{S_G}, s{S_G}, {FL_Y + 2048}")
    a(f"s_cmp_lt_u32 s{S_J}, 28\ns_cselect_b32 s{S_G}, s{S_G}, {OOB}\ns_cselect_b32 s{sNph}, {0 if o.get('nomoe') else 16 * MS - MS + 1}, 0")
    lane1(a, vFy, S_G, g.vT)
    a(f"s_lshl_b32 s{S_G}, s{sT0}, 5\ns_add_u32 s{S_G}, s{S_G}, s{S_J}\ns_lshl_b32 s{S_G}, s{S_G}, 2\ns_add_u32 s{S_G}, s{S_G}, s{S_W}\ns_lshl_b32 s{S_G}, s{S_G}, 2\ns_add_u32 s{S_G}, s{S_G}, {FL_Y + 1024}")
    lane1(a, vFz, S_G, g.vT)
    a(f"v_mov_b32 v{vVal}, 0\nbuffer_store_dword v{vVal}, v{vFl}, {WS}, 0 offen sc1\nbuffer_store_dword v{vVal}, v{vFy}, {WS}, 0 offen sc1\nbuffer_store_dword v{vVal}, v{vFz}, {WS}, 0 offen sc1")
    a(f"s_lshl_b32 s{S_G}, s{S_J}, 13\ns_lshl_b32 s{S_G+1}, s{S_W}, 11\ns_add_u32 s{S_G}, s{S_G}, s{S_G+1}\ns_lshl_b32 s{S_G+1}, s{sT0}, 24\ns_add_u32 s{S_G}, s{S_G}, s{S_G+1}")
    assert WS_KX == 0 and WS_VX == 1 << 24
    g.granule(vSt)
    a(f"v_add_u32 v{vSt}, s{S_G}, v{vSt}")
    srd(a, S_T, P_X, 4 << 20)
    a(f"s_lshl_b32 s{sRow}, s{S_J}, 8\ns_lshl_b32 s{S_G}, s{S_W}, 6\ns_add_u32 s{sRow}, s{sRow}, s{S_G}")
    a(f"s_cmp_eq_u32 s{sT0}, 0\ns_cselect_b32 s{P_WQ}, s{P_WK}, s{P_WV}\ns_cselect_b32 s{P_WQ+1}, s{P_WK+1}, s{P_WV+1}")
    g.weights(P_WQ, 13, lambda: arrive(a))
    g.addrs()
    tl(a, 2); tl(a, 6, clk=True)
    a(f"s_mov_b32 s{sS}, 0\ns_mov_b32 s{sSrc}, 0\ns_barrier")
    g.dma_now()
    a(f"v_lshrrev_b32 v{vT}, 5, v0\nv_lshlrev_b32 v{vT}, 4, v{vT}\nv_bfe_u32 v{vU}, v0, 3, 1\nv_lshl_add_u32 v{vT}, v{vU}, 3, v{vT}")
    a(f"v_mov_b32 v{vIdx}, 0x4444\nv_mul_u32_u24 v{vU}, 0xaaaa, v{vU}\nv_add_u32 v{vIdx}, v{vIdx}, v{vU}")
    a(f"v_bfe_u32 v{vU}, v0, 4, 1\nv_lshl_add_u32 v{vT}, v{vU}, 2, v{vT}\nv_bfe_u32 v{vU}, v0, 2, 1\nv_add_u32 v{vT}, v{vT}, v{vU}\nv_lshlrev_b32 v{vT}, 7, v{vT}")
    a(f"v_and_b32 v{vU}, 3, v0\nv_lshl_add_u32 v{vT}, v{vU}, 3, v{vT}\ns_lshl_b32 s{sT2}, s{S_W}, 13\ns_add_u32 s{sT2}, s{sT2}, {STG}")
    a(f"v_bfe_u32 v{vU}, v{vT}, 9, 2\nv_lshl_add_u32 v{vT}, v{vU}, 5, v{vT}\nv_add_u32 v{vTr}, s{sT2}, v{vT}")
    for T in range(1, 4): a(f"v_xor_b32 v{vTr+T}, {32*T}, v{vTr}")
    a(f"v_lshlrev_b32 v{vL16}, 4, v0\nv_mov_b32 v{vMW}, 0\nv_mov_b32 v{vMW2}, 0\nv_and_b32 v{vSw}, 0x70, v{vL16}\nv_and_b32 v{vT}, 32, v0\nv_xor_b32 v{vSw}, v{vSw}, v{vT}")
    a(f"v_lshrrev_b32 v{vT}, 5, v0\nv_and_b32 v{vU}, 15, v0\nv_lshl_add_u32 v{vT}, v{vT}, 4, v{vU}\nv_lshlrev_b32 v{vT}, 5, v{vT}\nv_bfe_u32 v{vU}, v0, 4, 1\nv_lshl_add_u32 v{vYs}, v{vU}, 4, v{vT}")
    a(f"s_lshl_b32 s{sYo}, s{sT1}, 15\ns_lshl_b32 s{S_G}, s{S_W}, 13\ns_add_u32 s{sYo}, s{sYo}, s{S_G}\ns_add_u32 s{sYo}, s{sYo}, {WS_YP}")
    wait_all_arrived(a)
    a(f"s_cmp_eq_u32 s{sT0}, 0\ns_cbranch_scc0 L_v_loop")
    for kv in range(2):
        nm = "kv"[kv]
        a(f"L_{nm}_loop:")
        a(f"s_xor_b32 s{sM0}, s{sM0}, 0x10000\ns_add_u32 s{sSrc}, s{sSrc}, 0x10000\nv_mov_b32 v{vVal}, s{sS}\ns_sub_u32 s{sPh}, s{sS}, {S0}")
        a("s_barrier")
        tl(a, 16, sS)
        FG = o.get('fg', 60)
        hooks = g.dma_hooks()
        MB = o.get('mb', 49)
        if FG < MB: addh(hooks, FG, f"s_waitcnt vmcnt({g.ndma(FG)})\nbuffer_store_dword v{vVal}, v{vFl}, {WS}, 0 offen sc1")
        addh(hooks, MB, "s_waitcnt vmcnt(0)")
        if FG >= MB: addh(hooks, MB, f"buffer_store_dword v{vVal}, v{vFl}, {WS}, 0 offen sc1")
        addh(hooks, MB, f"{g.warm()}\ns_cmp_lt_u32 s{sPh}, s{sNph}")
        addh(hooks, MB + 1, f"s_cbranch_scc1 L_moe\nL_moe_ret{kv}:")
        g.compute(ring, kv == 1, hooks)
        g.toggle_read()
        a(f"s_lshl_b32 s{sK}, s{sS}, 18\ns_add_u32 s{sS}, s{sS}, 1")
        for i in range(8): cvt(a, vP + i, g.acc + 2 * i, g.acc + 2 * i + 1)
        for u in range(2): a(f"buffer_store_dwordx4 v[{vP+4*u}:{vP+4*u+3}], v{vSt}, {WS}, s{sK} offen offset:{128*u} sc1")
        a(f"s_cmp_lt_u32 s{sS}, 64\ns_cbranch_scc1 L_{nm}_loop")
        if kv == 0: a("s_branch L_kv_done")
    a("L_kv_done:")
    tl(a, 3); tl(a, 7, clk=True)
    a(f"v_mov_b32 v{vVal}, 64\nbuffer_store_dword v{vVal}, v{vFy}, {WS}, 0 offen sc1\ns_waitcnt vmcnt(0)\nbuffer_store_dword v{vVal}, v{vFl}, {WS}, 0 offen sc1")
    if o.get('nomoe'): a("s_branch L_drain")
    a(f"s_lshl_b32 s{sK}, s{sT0}, 5\ns_add_u32 s{sK}, s{sK}, s{S_J}\ns_lshr_b32 s{S_G}, s{sK}, 4\ns_lshl_b32 s{S_G}, s{S_G}, 8\ns_add_u32 s{S_G}, s{S_G}, {FL_Y + 2048}")
    a(f"v_min_u32 v{vT}, 55, v0\nv_lshlrev_b32 v{vT}, 2, v{vT}\nv_add_u32 v{vT}, s{S_G}, v{vT}")
    poll(a, vT, vU, 0, sleep=8)
    tl(a, 11)
    a(f"s_lshl_b32 s{sK}, s{sK}, 2\ns_add_u32 s{sK}, s{sK}, s{S_W}")
    a(f"s_lshl_b32 s{sT2}, s{sK}, 7\ns_add_u32 s{S_G}, s{sT2}, {WS_YP}")
    a(f"v_and_b32 v{vMW}, 31, v0\nv_lshlrev_b32 v{vMW}, 2, v{vMW}\nv_lshrrev_b32 v{vU}, 5, v0\nv_lshl_add_u32 v{vT}, v{vU}, 15, v{vMW}")
    for m in range(28):
        a(f"buffer_load_dword v{vB+m}, v{vT}, {WS}, s{S_G} offen sc1\ns_add_u32 s{S_G}, s{S_G}, 0x10000")
    a("s_waitcnt vmcnt(0)")
    for m in range(2, 28, 2): pk(a, 'add', vB, vB, vB + m)
    a(f"v_add_f32 v{vB}, v{vB}, v{vB+1}\nv_mov_b32 v{vB+1}, v{vB}\nv_permlane32_swap_b32 v{vB}, v{vB+1}\nv_add_f32 v{vB}, v{vB}, v{vB+1}")
    a(f"s_add_u32 s{sT2}, s{sT2}, {WS_YS}\nbuffer_store_dword v{vB}, v{vMW}, {WS}, s{sT2} offen sc1")
    a(f"v_mov_b32 v{vU}, 1\ns_waitcnt vmcnt(0)\nbuffer_store_dword v{vU}, v{vFz}, {WS}, 0 offen sc1")
    a("s_branch L_drain")

    def zero():
        for i in range(16): a(f"v_mov_b32 v{acc+i}, 0")
    def base(p):
        a(f"s_mov_b32 s{S_B0}, s{p}\ns_and_b32 s{S_B0+1}, s{p+1}, 0xffff\ns_mov_b32 s{S_B0+2}, {3584 * 1024 * 2}")
    def gu_off():
        a(f"s_mul_i32 s{sMo}, s{S_W}, {256 * 7168}\ns_lshl_b32 s{S_G}, s{sT1}, 7\ns_add_u32 s{sMo}, s{sMo}, s{S_G}")
    a("L_moe:")
    if MS > 1:
        assert MS in (2, 4)
        a(f"s_and_b32 s{S_G}, s{sPh}, {MS-1}\ns_cbranch_scc0 L_moe_ph\ns_cmp_eq_u32 s{sLeft}, 0\ns_cbranch_scc0 L_moe_more\ns_branch L_moe_out")
        a(f"L_moe_ph:\ns_lshr_b32 s{sPh}, s{sPh}, {MS//2}")
    for ph, l in ((0, 'a'), (9, 'c'), (10, 'd'), (11, 'e')): a(f"s_cmp_eq_u32 s{sPh}, {ph}\ns_cbranch_scc1 L_moe_{l}")
    for T in range(4):
        for p in range(4): a(f"ds_read_b64_tr_b16 v[{vB+8*T+2*p}:{vB+8*T+2*p+1}], v{vTr+T} offset:{(32*(p>>1) + 2*(p&1))*128}")
    a("s_waitcnt lgkmcnt(0)")
    for T in range(4): a(f"v_smfmac_f32_16x16x64_bf16 v[{acc+4*T}:{acc+4*T+3}], v[{vX}:{vX+3}], v[{vB+8*T}:{vB+8*T+7}], v{vIdx}")
    a(f"s_cmp_gt_u32 s{sPh}, 8\ns_cbranch_scc1 L_moe_f")
    for i in range(4): a(f"v_mov_b32 v{vX+16+i}, v{vX+i}")
    for i in range(16): a(f"v_mov_b32 v{vX+i}, v{vX+4+i}")
    a(f"s_cmp_eq_u32 s{sPh}, 8\ns_cbranch_scc1 L_moe_b\ns_cmp_lg_u32 s{sPh}, 4\ns_cbranch_scc1 L_moe_issue")
    for i in range(16): a(f"v_mov_b32 v{vG+i}, v{acc+i}")
    zero(); base(P_WU); gu_off()
    a("L_moe_issue:")
    a(f"s_mov_b32 s{sMl}, s{sT2}\ns_mov_b32 s{sLeft}, {MS}\ns_add_u32 s{sMo}, s{sMo}, s{sMu}")
    a("L_moe_more:")
    a(f"s_mov_b32 m0, s{sMl}\ns_sub_u32 s{sLeft}, s{sLeft}, 1")
    for i in range(8 // MS):
        a(f"buffer_load_dwordx4 v{vMW2 if i & 1 else vMW}, s[{S_B0}:{S_B0+3}], s{sMo} offen {NT} lds\ns_add_u32 m0, m0, 1024\ns_add_u32 s{sMo}, s{sMo}, s{sMs}")
    a(f"s_mov_b32 s{sMl}, m0")
    a("L_moe_out:")
    a(f"s_waitcnt lgkmcnt(0)\ns_cmp_eq_u32 s{sT0}, 0\ns_cbranch_scc1 L_moe_ret0\ns_branch L_moe_ret1")
    a("L_moe_a:")
    a(f"v_and_b32 v{vT}, 7, v0\nv_lshlrev_b32 v{vT}, 2, v{vT}\nv_add_u32 v{vT}, {FL_Y + 128}, v{vT}")
    poll(a, vT, vU, 0)
    a(f"v_not_b32 v{vU}, v{vU}\nv_and_b32 v{vU}, 0x7ff, v{vU}\nv_lshlrev_b32 v{vU}, 11, v{vU}\nv_lshrrev_b32 v{vT}, 3, v0\nv_lshl_add_u32 v{vU}, v{vT}, 4, v{vU}\ns_lshl_b32 s{S_G}, s{S_W}, 9")
    for t in range(4): a(f"buffer_load_dwordx4 v[{vX+4*t}:{vX+4*t+3}], v{vU}, {SX}, s{S_G} offen offset:{128*t}")
    a(f"v_mul_u32_u24 v{vMW}, 7168, v{vT}\nv_add_u32 v{vMW}, v{vMW}, v{vSw}\nv_xor_b32 v{vMW2}, 64, v{vMW}\ns_mov_b32 s{sMs}, {8 * 7168}\ns_mov_b32 s{sMu}, 0")
    zero(); base(P_WG); gu_off()
    a("s_branch L_moe_issue")
    a("L_moe_b:")
    a(f"v_add_u32 v{vT}, s{sT2}, v{vL16}")
    for T in range(8): a(f"ds_write_b128 v{vT}, v[{(vG if T < 4 else acc - 16) + 4*T}:{(vG if T < 4 else acc - 16) + 4*T + 3}] offset:{1024*T}")
    a("s_branch L_moe_out")
    a("L_moe_c:")
    vR = vB
    a(f"s_lshl_b32 s{S_G}, s{S_W}, 10\ns_add_u32 s{S_G+1}, s{S_G}, {STG}\nv_add_u32 v{vT}, s{S_G+1}, v{vL16}")
    for ww in range(4):
        for k in range(2): a(f"ds_read_b128 v[{vR+8*ww+4*k}:{vR+8*ww+4*k+3}], v{vT} offset:{8192*ww + 4096*k}")
    a("s_waitcnt lgkmcnt(0)")
    for i in range(0, 8, 2):
        pk(a, 'add', vR + i, vR + i, vR + 8 + i); pk(a, 'add', vR + 16 + i, vR + 16 + i, vR + 24 + i); pk(a, 'add', vR + i, vR + i, vR + 16 + i)
    for i in range(8): a(f"v_mov_b32 v{vR+8+i}, v{vR+i}")
    for i in range(8): a(f"v_permlane32_swap_b32 v{vR+i}, v{vR+8+i}")
    for i in range(0, 8, 2): pk(a, 'add', vR + i, vR + i, vR + 8 + i)
    for i in range(4): a(f"v_mul_f32 v{vR+8+i}, {hex(f32bits(-LOG2E))}, v{vR+i}")
    for i in range(4): a(f"v_exp_f32 v{vR+8+i}, v{vR+8+i}")
    for i in range(4): a(f"v_add_f32 v{vR+8+i}, 1.0, v{vR+8+i}")
    for i in range(4): a(f"v_rcp_f32 v{vR+8+i}, v{vR+8+i}")
    for i in range(4): a(f"v_mul_f32 v{vR+i}, v{vR+i}, v{vR+8+i}")
    for i in range(4): a(f"v_mul_f32 v{vR+i}, v{vR+i}, v{vR+4+i}")
    for i in range(4): cvt(a, vR + i, vR + i, vR + i)
    a(f"v_bfe_u32 v{vT}, v0, 4, 1\nv_lshlrev_b32 v{vT}, 7, v{vT}\nv_and_b32 v{vU}, 15, v0\nv_lshl_add_u32 v{vT}, v{vU}, 1, v{vT}\ns_add_u32 s{S_G}, s{S_G}, s{sT2}\nv_add_u32 v{vT}, s{S_G}, v{vT}")
    for i in range(4): a(f"ds_write_b16 v{vT}, v{vR+i} offset:{32*i}")
    a("s_branch L_moe_out")
    a("L_moe_d:")
    a(f"v_lshrrev_b32 v{vT}, 4, v0\nv_mul_u32_u24 v{vT}, 9216, v{vT}\nv_and_b32 v{vU}, 7, v0\nv_lshl_add_u32 v{vT}, v{vU}, 5, v{vT}\nv_bfe_u32 v{vU}, v0, 3, 1\nv_lshl_add_u32 v{vT}, v{vU}, 4, v{vT}\nv_add_u32 v{vT}, {STG}, v{vT}")
    a(f"ds_read_b128 v[{vX}:{vX+3}], v{vT}\ns_branch L_moe_out")
    a("L_moe_e:")
    a(f"v_lshrrev_b32 v{vT}, 3, v0\nv_lshl_add_u32 v{vMW}, v{vT}, 11, v{vSw}\nv_xor_b32 v{vMW2}, 64, v{vMW}\ns_mov_b32 s{sMs}, {8 * 2048}\ns_mov_b32 s{sMu}, {(128 - 64 * 2048) & 0xffffffff}")
    a(f"s_lshl_b32 s{sMo}, s{sT1}, 17\ns_lshl_b32 s{S_G}, s{S_W}, 9\ns_add_u32 s{sMo}, s{sMo}, s{S_G}\ns_sub_u32 s{sMo}, s{sMo}, s{sMu}")
    zero(); base(P_WD)
    a("s_branch L_moe_issue")
    a("L_moe_f:")
    a("s_nop 7")
    for P in range(2):
        b = acc + 8 * P
        for i in range(4): a(f"v_permlane32_swap_b32 v{b+i}, v{b+4+i}")
        for i in (0, 2): pk(a, 'add', vG + 4 * P + i, b + i, b + 4 + i)
        a(f"buffer_store_dwordx4 v[{vG+4*P}:{vG+4*P+3}], v{vYs}, {WS}, s{sYo} offen offset:{1024*P} sc1")
    zero()
    a(f"s_add_u32 s{sYo}, s{sYo}, 2048\ns_cmp_lt_u32 s{sPh}, 15\ns_cbranch_scc1 L_moe_issue\ns_branch L_moe_out")

def gen_q(a, o):
    V = VAlloc(1); g = Gemm(a, V, False, o)
    vQw = V(); vQr = V(); vL = V(); vKmA = V(); vVmA = V(); vF = V(); vFd = V(); vFo = V(); vFc = V(); vFv = V()
    vT = V(2, 2); vM = V(2, 2); vC = V(2, 2)
    vQ = V(32, 4); vK = V(32, 4); vV = V(32, 4); vKm = V(32, 4); vB = V(16, 4); vVm = V(16, 4); vPf = V(12, 4); ring = V(32, 4)
    vSx = g.acc; vSm = ring; vO2 = ring + 16; vP = vK
    sPre, sA0, sA1, sA2, sA3, sA4, sPrm, sHur = range(sKey, sKey + 8)
    QB = LDS_MISC
    a("L_q:")
    a(f"s_lshr_b32 s{S_G}, s{S_J}, 3\ns_lshl_b32 s{S_G}, s{S_G}, 7\ns_and_b32 s{S_G+1}, s{S_J}, 7\ns_lshl_b32 s{S_G+1}, s{S_G+1}, 4\ns_add_u32 s{S_G}, s{S_G}, s{S_G+1}")
    a(f"s_lshl_b32 s{S_G+1}, s{S_W}, 2\ns_add_u32 s{S_G}, s{S_G}, s{S_G+1}\ns_add_u32 s{S_G}, s{S_G}, {FL_O}")
    lane1(a, vFo, S_G, vFc)
    a(f"v_mov_b32 v{vFv}, 0\nv_mov_b32 v{vFd}, 0\nbuffer_store_dword v{vFv}, v{vFo}, {WS}, 0 offen sc1")
    a(f"s_lshl_b32 s{S_G}, s{S_J}, 7\ns_add_u32 s{S_G}, s{S_G}, {FL_KV}\nv_and_b32 v{vF}, 7, v0\nv_and_b32 v{vT}, 3, v0\nv_add_u32 v{vT}, {(FL_M - FL_KV) // 4}, v{vT}")
    a(f"v_cmp_gt_u32 vcc, 32, v0\nv_cndmask_b32 v{vF}, v{vT}, v{vF}, vcc\nv_lshlrev_b32 v{vF}, 2, v{vF}\nv_add_u32 v{vF}, s{S_G}, v{vF}")
    a(f"v_lshlrev_b32 v{vT}, 4, v0\ns_lshl_b32 s{S_G}, s{S_J}, 13\nv_add_u32 v{vL}, s{S_G}, v{vT}")
    a(f"s_lshl_b32 s{S_G}, s{S_W}, 13\ns_add_u32 s{S_G}, s{S_G}, {QB}\nv_add_u32 v{vQr}, s{S_G}, v{vT}")
    g.granule(vQw)
    a(f"s_lshl_b32 s{S_G}, s{S_W}, 11\ns_add_u32 s{S_G}, s{S_G}, {QB}\nv_add_u32 v{vQw}, s{S_G}, v{vQw}")
    a(f"s_lshl_b32 s{S_G}, s{S_J}, 12\ns_add_u32 s{S_G}, s{S_G}, {WS_KVM}\nv_lshrrev_b32 v{vT}, 5, v0")
    a(f"v_and_b32 v{vKmA}, 7, v0\nv_lshlrev_b32 v{vKmA}, 4, v{vKmA}\nv_lshl_add_u32 v{vKmA}, v{vT}, 7, v{vKmA}\nv_add_u32 v{vKmA}, s{S_G}, v{vKmA}")
    a(f"v_and_b32 v{vVmA}, 31, v0\nv_lshlrev_b32 v{vVmA}, 4, v{vVmA}\nv_lshl_add_u32 v{vVmA}, v{vT}, 3, v{vVmA}\nv_add_u32 v{vVmA}, s{S_G}, v{vVmA}")
    a(f"v_and_b32 v{vT+1}, 31, v0\nv_lshlrev_b32 v{vT}, 2, v{vT}\nv_sub_u32 v{vT}, v{vT+1}, v{vT}\nv_mov_b32 v{vT+1}, {hex(f32bits(-1e30))}")
    for r in range(16):
        a(f"v_cmp_gt_i32 vcc, {8*(r>>2) + (r&3)}, v{vT}\nv_cndmask_b32 v{vB+r}, 0, v{vT+1}, vcc")
    for c in range(4): a(f"v_mov_b32 v{vVm+4*c+2}, 0\nv_mov_b32 v{vVm+4*c+3}, 0")
    a(f"v_mov_b32 v{vPf+10}, 0\nv_mov_b32 v{vPf+11}, 0")
    sc = hex(f32bits(128 ** -0.5 * LOG2E))
    a(f"v_mov_b32 v{vC}, {sc}\nv_mov_b32 v{vC+1}, {sc}")
    srd(a, S_T, P_X, 4 << 20)
    a(f"s_lshl_b32 s{sRow}, s{S_J}, 8\ns_lshl_b32 s{S_G}, s{S_W}, 6\ns_add_u32 s{sRow}, s{sRow}, s{S_G}")
    g.weights(P_WQ, 13, lambda: arrive(a))
    g.addrs()
    tl(a, 2)
    a(f"s_mov_b32 s{sS}, 0\ns_mov_b32 s{sSrc}, 0\ns_barrier")
    g.dma_now()
    wait_all_arrived(a)
    a(f"s_sub_u32 s{sT0}, s{S_W}, 4")
    ldK = [f"buffer_load_dwordx4 v[{vK+4*k}:{vK+4*k+3}], v{vL}, {WS}, s{sA0 if k < 4 else sA1} offen offset:{1024*(k%4)} sc1" for k in range(8)]
    ldV = [f"buffer_load_dwordx4 v[{vV+4*k}:{vV+4*k+3}], v{vL}, {WS}, s{sA2 if k < 4 else sA3} offen offset:{1024*(k%4)} sc1" for k in range(8)]
    ldM = [f"buffer_load_dwordx4 v[{vKm+4*k}:{vKm+4*k+3}], v{vKmA}, {WS}, s{sA4} offen offset:{1024*(k>>1) + 256*(k&1)} sc1" for k in range(8)]
    ldM += [f"buffer_load_dwordx2 v[{vVm+4*c}:{vVm+4*c+1}], v{vVmA}, {WS}, s{sA4} offen offset:{1024*c + 512} sc1" for c in range(4)]
    def offs_kv(base):
        a(f"s_lshl_b32 s{sA0}, s{sT0}, 18")
        if base: a(f"s_or_b32 s{sA0}, s{sA0}, s{base}")
        a(f"s_add_u32 s{sA1}, s{sA0}, 4096\ns_or_b32 s{sA2}, s{sA0}, {WS_VX}\ns_or_b32 s{sA3}, s{sA1}, {WS_VX}")
    def offs_m(base):
        a(f"s_lshl_b32 s{sA4}, s{sT0}, 17")
        if base: a(f"s_or_b32 s{sA4}, s{sA4}, s{base}")
    def sx(wait):
        for k in range(8):
            if wait: a(f"s_waitcnt vmcnt({15-k})")
            m32(a, vSx, f"v[{vK+4*k}:{vK+4*k+3}]", f"v[{vQ+4*k}:{vQ+4*k+3}]", f"v[{vB}:{vB+15}]" if k == 0 else f"v[{vSx}:{vSx+15}]")
    a("L_q_loop:")
    for i in range(4):
        if i: a("s_waitcnt vmcnt(1)")
        a(f"s_xor_b32 s{sM0}, s{sM0}, 0x10000\ns_add_u32 s{sSrc}, s{sSrc}, 0x10000\ns_barrier")
        tl(a, 16, sS)
        hooks = g.dma_hooks()
        if i == 0: addh(hooks, 30, f"s_waitcnt vmcnt({g.ndma(30)})\nbuffer_store_dword v{vFv}, v{vFc}, {WS}, 0 offen sc1")
        if i == 1:
            a(f"v_cmp_ge_u32 vcc, s{sT0}, v{vFd}\ns_cmp_eq_u32 vcc_lo, 0\ns_cselect_b32 s{sPre}, 0, {OOB}")
            offs_kv(sPre)
        if i == 3:
            a(f"v_cmp_ge_u32 vcc, s{sT0}, v{vFd}\ns_cmp_eq_u32 vcc_hi, 0\ns_cselect_b32 s{sPrm}, 0, {OOB}")
            offs_m(sPrm)
            a(f"s_or_b32 s{S_G}, s{sT0}, 3\nv_cmp_ge_u32 vcc, s{S_G}, v{vFd}\ns_mov_b32 s{sHur}, vcc_hi")
        for k, l in enumerate(([], ldK, ldV, ldM)[i]): addh(hooks, 3 * k + 2, l)
        if i in (0, 2): addh(hooks, 40, f"buffer_load_dword v{vFd}, v{vF}, {WS}, 0 offen sc1")
        addh(hooks, 50, g.warm())
        g.compute(ring, False, hooks)
        g.toggle_read()
        a(f"s_add_u32 s{sS}, s{sS}, 1")
        for k in range(8): cvt(a, ring + k, g.acc + 2 * k, g.acc + 2 * k + 1)
        for u in range(2): a(f"ds_write_b128 v{vQw}, v[{ring+4*u}:{ring+4*u+3}] offset:{8192*i + 128*u}")
        a("s_waitcnt lgkmcnt(0)")
    a("s_waitcnt vmcnt(1)\ns_barrier")
    a(f"s_cmp_lt_i32 s{sT0}, 0\ns_cbranch_scc1 L_q_next")
    a(f"s_cmp_lg_u32 s{sPre}, 0\ns_cbranch_scc1 L_q_block")
    sx(False)
    a(f"s_cmp_eq_u32 s{sPrm}, 0\ns_cbranch_scc1 L_q_att\ns_branch L_q_blockm")
    a("L_q_block:")
    offs_kv(None)
    a("s_mov_b32 exec_hi, 0")
    poll(a, vF, vFd, f"s{sT0}")
    a("s_mov_b64 exec, -1")
    for l in ldK + ldV: a(l)
    sx(True)
    a("L_q_blockm:")
    offs_m(None)
    poll(a, vF, vFd, f"s{sT0}", sleep=1)
    for l in ldM: a(l)
    a("s_waitcnt vmcnt(4)")
    a("L_q_att:")
    tl(a, 96, sT0)
    for k in range(8):
        m32(a, vSm, f"v[{vKm+4*k}:{vKm+4*k+3}]", f"v[{vQ+4*k}:{vQ+4*k+3}]", "0" if k == 0 else f"v[{vSm}:{vSm+15}]")
        if k == 2:
            a(f"v_max3_f32 v{vM}, v{vSx}, v{vSx+1}, v{vSx+2}")
            for r in range(3, 11, 2): a(f"v_max3_f32 v{vM}, v{vM}, v{vSx+r}, v{vSx+r+1}")
        if k == 3:
            for r in range(11, 15, 2): a(f"v_max3_f32 v{vM}, v{vM}, v{vSx+r}, v{vSx+r+1}")
            a(f"v_max_f32 v{vM}, v{vM}, v{vSx+15}")
            a(f"s_add_u32 s{sA2}, s{sA2}, {WS_O - WS_VX}\ns_add_u32 s{sA3}, s{sA3}, {WS_O - WS_VX}")
    a(f"v_max3_f32 v{vM}, v{vM}, v{vSm}, v{vSm+1}\nv_max3_f32 v{vM}, v{vM}, v{vSm+2}, v{vSm+3}")
    a(f"v_mov_b32 v{vT}, v{vM}\nv_permlane32_swap_b32 v{vM}, v{vT}\nv_max_f32 v{vM}, v{vM}, v{vT}\nv_mul_f32 v{vM}, v{vM}, v{vC}")
    regs = [vSx + i for i in range(0, 16, 2)] + [vSm, vSm + 2]
    for r in regs: a(f"v_pk_fma_f32 v[{r}:{r+1}], v[{r}:{r+1}], v[{vC}:{vC+1}], v[{vM}:{vM+1}] op_sel_hi:[1,1,0] neg_lo:[0,0,1] neg_hi:[0,0,1]")
    for r in regs: a(f"v_exp_f32 v{r}, v{r}\nv_exp_f32 v{r+1}, v{r+1}")
    for i, r in enumerate(regs): cvt(a, vPf + i, r, r + 1)
    a("s_waitcnt vmcnt(0)")
    def pv(c):
        d = (vO2, vKm)[c & 1]
        m32(a, d, f"v[{vV+8*c}:{vV+8*c+3}]", f"v[{vPf}:{vPf+3}]", "0")
        if c == 0:
            pk(a, 'add', vM, regs[0], regs[1])
            for r in regs[2:6]: pk(a, 'add', vM, vM, r)
        if c == 1: a(f"v_rcp_f32 v{vM}, v{vM}")
        m32(a, d, f"v[{vV+8*c+4}:{vV+8*c+7}]", f"v[{vPf+4}:{vPf+7}]", f"v[{d}:{d+15}]")
        if c == 0:
            for r in regs[6:]: pk(a, 'add', vM, vM, r)
            a(f"v_add_f32 v{vM}, v{vM}, v{vM+1}")
        m32(a, d, f"v[{vVm+4*c}:{vVm+4*c+3}]", f"v[{vPf+8}:{vPf+11}]", f"v[{d}:{d+15}]")
        if c == 0: a(f"v_mov_b32 v{vT}, v{vM}\nv_permlane32_swap_b32 v{vM}, v{vT}\nv_add_f32 v{vM}, v{vM}, v{vT}")
    def fin(c):
        d = (vO2, vKm)[c & 1]; p = vP + 8 * c
        for i in range(0, 16, 2): pk(a, 'mul', d + i, d + i, vM, "op_sel_hi:[1,0]")
        for i in range(8): cvt(a, p + i, d + 2 * i, d + 2 * i + 1)
        for u in range(2):
            k = 2 * c + u
            a(f"buffer_store_dwordx4 v[{p+4*u}:{p+4*u+3}], v{vL}, {WS}, s{sA2 if k < 4 else sA3} offen offset:{1024*(k%4)} sc1")
    pv(0); pv(1); fin(0); pv(2); fin(1); pv(3); fin(2); fin(3)
    a(f"v_add_u32 v{vFv}, 1, v{vFv}\nv_mov_b32 v{vFc}, v{vFo}")
    tl(a, 160, sT0)
    a(f"s_lshr_b32 s{S_G}, s{sS}, 6\ns_or_b32 s{S_G}, s{S_G}, s{sHur}\ns_cbranch_scc0 L_q_next")
    a(f"s_waitcnt vmcnt(0)\nbuffer_store_dword v{vFv}, v{vFo}, {WS}, 0 offen sc1\nv_mov_b32 v{vFc}, {OOB}")
    a(f"s_cmp_ge_u32 s{sT0}, 60\ns_cbranch_scc1 L_drain")
    a("L_q_next:")
    for k in range(8): a(f"ds_read_b128 v[{vQ+4*k}:{vQ+4*k+3}], v{vQr} offset:{1024*k}")
    a(f"s_add_u32 s{sT0}, s{sT0}, 4\ns_waitcnt lgkmcnt(0)")
    a(f"s_cmp_lt_u32 s{sS}, 64\ns_cbranch_scc1 L_q_loop\ns_branch L_q_block")

def gen_o(a, o):
    V = VAlloc(1); g = Gemm(a, V, True, o)
    vT = V(2, 2); vU = V(2, 2); vFo = V(); vFv = V(); vPs = V(); vPl = [V(), V(), V()]; vXo = V(); vGo = V(); vTok = V(); vSa = V()
    vSv = V(2, 2); vY = V(2, 2); vX = V(2, 2); vG = V(2, 2); fX = V(4, 4); fG = V(2, 2); fA = V(4, 4); vR = V(12, 4); ring = V(4 * D, 4); big = V(128, 4)
    SO = f"s[{S_B0+4}:{S_B0+7}]"; SAVE = LDS_MISC
    sKq, sPend, sTag, sSl, sCol, sFs, sDef, sFrom = range(sKey + 8, sKey + 16)
    a("L_o:")
    a(f"s_lshr_b32 s{sKq}, s{S_J}, 3\ns_and_b32 s{sT0}, s{S_J}, 7")
    a(f"s_lshl_b32 s{S_G}, s{sT0}, 16\ns_lshl_b32 s{S_G+1}, s{S_W}, 14\ns_add_u32 s{S_G}, s{S_G}, s{S_G+1}\ns_lshl_b32 s{S_G+1}, s{sKq}, 12\ns_add_u32 s{S_G}, s{S_G}, s{S_G+1}\ns_add_u32 s{S_G}, s{S_G}, {WS_RP}")
    a(f"v_lshlrev_b32 v{vPs}, 4, v0\nv_add_u32 v{vPs}, s{S_G}, v{vPs}")
    for r in range(1, 4): a(f"v_xor_b32 v{vPl[r-1]}, {4096*r}, v{vPs}")
    for i in range(4): a(f"v_mov_b32 v{vR+i}, -1")
    a(f"s_mov_b32 s{S_G}, 0x80000")
    for r in range(1, 4):
        a(f"buffer_store_dwordx4 v[{vR}:{vR+3}], v{vPs}, {WS}, 0 offen offset:{1024*r}\nbuffer_store_dwordx4 v[{vR}:{vR+3}], v{vPs}, {WS}, s{S_G} offen offset:{1024*r}")
    a(f"s_lshl_b32 s{S_G}, s{S_J}, 2\ns_add_u32 s{S_G}, s{S_G}, {FL_Y}")
    lane1(a, vFv, S_G, vT)
    a(f"v_mov_b32 v{vU}, 0\nbuffer_store_dword v{vU}, v{vFv}, {WS}, 0 offen sc1")
    a(f"v_and_b32 v{vY}, 7, v0\nv_lshlrev_b32 v{vY}, 2, v{vY}\nv_add_u32 v{vY}, {FL_Y + 128}, v{vY}")
    l = a.label('kz')
    a(f"s_cmp_lg_u32 s{S_J}, 0\ns_cbranch_scc1 {l}\nbuffer_store_dword v{vU}, v{vY}, {WS}, 0 offen sc1\n{l}:")
    a("s_waitcnt vmcnt(0)")
    arrive(a)
    srd(a, S_T, P_X, 4 << 20); srd(a, S_B0 + 4, P_WR, 2048); srd(a, S_B0 + 8, P_GW, 2048)
    a(f"v_and_b32 v{vT}, 15, v0\nv_lshrrev_b32 v{vU}, 4, v0\nv_lshlrev_b32 v{vU}, 4, v{vU}\nv_lshl_add_u32 v{vT}, v{vT}, 11, v{vU}")
    a(f"s_lshl_b32 s{sK}, s{S_J}, 17\ns_lshl_b32 s{S_G}, s{S_W}, 15\ns_add_u32 s{sK}, s{sK}, s{S_G}")
    a(f"s_mov_b32 s{sT1}, 0xaaaaaaaa\ns_mov_b32 s{sT2}, 0xaaaaaaaa")
    assert sT1 % 2 == 0
    for t in range(32): a(f"buffer_load_dwordx4 a[{4*t}:{4*t+3}], v{vT}, {SX}, s{sK} offen offset:{64*t}")
    for half in range(2):
        if half: a("s_waitcnt vmcnt(31)")
        a(f"s_not_b64 exec, s[{sT1}:{sT2}]")
        for t in range(16): a(f"buffer_load_dwordx4 v[{big+64*half+4*t}:{big+64*half+3+4*t}], v{vU}, s[{S_B0+4}:{S_B0+7}], 0 offen offset:{1024*half + 64*t}")
        if not half: a("s_waitcnt vmcnt(47)")
        a(f"s_mov_b64 exec, s[{sT1}:{sT2}]")
        for t in range(16): a(f"buffer_load_dwordx4 v[{big+64*half+4*t}:{big+64*half+3+4*t}], v{vU}, s[{S_B0+8}:{S_B0+11}], 0 offen offset:{1024*half + 64*t}")
    a("s_mov_b64 exec, -1\ns_waitcnt vmcnt(0)")
    for t in range(32):
        a(f"v_mfma_f32_16x16x32_bf16 v[{vR}:{vR+3}], a[{4*t}:{4*t+3}], v[{big+4*t}:{big+3+4*t}], " + ("0" if t == 0 else f"v[{vR}:{vR+3}]"))
    a(f"v_and_b32 v{vT}, 15, v0\nv_lshl_add_u32 v{vU}, v{vT}, 13, v{vU}\nv_cmp_gt_u32 vcc, 2, v{vT}\nv_mov_b32 v{vT}, {OOB}\nv_cndmask_b32 v{vU}, v{vT}, v{vU}, vcc")
    a(f"s_lshr_b32 s{sK}, s{sK}, 9\ns_add_u32 s{sK}, s{sK}, {WS_RG}")
    a(f"buffer_store_dwordx4 v[{vR}:{vR+3}], v{vU}, {WS}, s{sK} offen sc1")
    tl(a, 5)
    a(f"s_lshl_b32 s{sCol}, s{sT0}, 8\ns_lshl_b32 s{S_G}, s{S_W}, 6\ns_add_u32 s{sCol}, s{sCol}, s{S_G}\ns_lshl_b32 s{sRow}, s{sKq}, 21\ns_add_u32 s{sRow}, s{sRow}, s{sCol}")
    a(f"s_and_b32 s{sT1}, s{sKq}, 1\ns_lshl_b32 s{sT1}, s{sT1}, 5\ns_add_u32 s{sCol}, s{sCol}, s{sT1}")
    def rgflag():
        l = a.label('rf')
        a(f"s_barrier\nv_mov_b32 v{vT}, 1\ns_cmp_lg_u32 s{S_W}, 0\ns_cbranch_scc1 {l}\nbuffer_store_dword v{vT}, v{vFv}, {WS}, 0 offen sc1\n{l}:")
    g.weights(P_WO, 11, rgflag, sKq)
    g.addrs(sKq)
    tl(a, 2)
    wait_all_arrived(a)
    l = a.label('t8')
    a(f"s_or_b32 s{S_G}, s{S_J}, s{S_W}\ns_cbranch_scc1 {l}")
    a(f"v_and_b32 v{vT}, 31, v0\nv_lshlrev_b32 v{vT}, 2, v{vT}\nv_add_u32 v{vT}, {FL_Y}, v{vT}")
    poll(a, vT, vU, 0)
    a(f"v_lshlrev_b32 v{vT}, 4, v0\ns_mov_b32 s{sK}, {WS_RG}\ns_mov_b32 s{sT1}, {WS_RG + 4096}")
    for k in range(8): a(f"buffer_load_dwordx4 v[{big+4*k}:{big+4*k+3}], v{vT}, {WS}, s{sK if k < 4 else sT1} offen offset:{1024*(k%4)} sc1")
    a(f"v_lshlrev_b32 v{vT}, 2, v0\nv_sub_u32 v{vT}, 0xfff, v{vT}\ns_waitcnt vmcnt(0)")
    for i in range(32):
        r = big + i
        a(f"v_cvt_pk_bf16_f32 v{r}, 0, v{r}\nv_ashrrev_i32 v{vU}, 31, v{r}\nv_or_b32 v{vU}, 0x80000000, v{vU}\nv_xor_b32 v{r}, v{r}, v{vU}\nv_and_b32 v{r}, 0xffff0000, v{r}")
        a(f"v_subrev_u32 v{vU}, {256*(i>>2) + (i&3)}, v{vT}\nv_or_b32 v{r}, v{r}, v{vU}")
    a(f"s_mov_b32 s{sK}, 0\ns_mov_b32 s{sT1}, 0\nv_mov_b32 v{vX}, 0")
    lt = a.label('tk')
    a(f"{lt}:")
    a(f"v_max3_u32 v{vU}, v{big}, v{big+1}, v{big+2}")
    for i in range(3, 31, 2): a(f"v_max3_u32 v{vU}, v{vU}, v{big+i}, v{big+i+1}")
    a(f"v_max_u32 v{vU}, v{vU}, v{big+31}")
    for sh in (1, 2, 4, 8): a(f"v_max_u32_dpp v{vU}, v{vU}, v{vU} row_ror:{sh} row_mask:0xf bank_mask:0xf")
    for op in ("16", "32"): a(f"v_mov_b32 v{vT}, v{vU}\nv_permlane{op}_swap_b32 v{vU}, v{vT}\nv_max_u32 v{vU}, v{vU}, v{vT}")
    a(f"v_readfirstlane_b32 s{sT2}, v{vU}")
    for i in range(32): a(f"v_sub_u32 v{big+i}, v{big+i}, v{vU}")
    a(f"s_add_u32 s{sT1}, s{sT1}, s{sT2}\ns_mov_b32 m0, s{sK}\nv_writelane_b32 v{vX}, s{sT1}, m0")
    a(f"s_add_u32 s{sK}, s{sK}, 1\ns_cmp_lt_u32 s{sK}, 8\ns_cbranch_scc1 {lt}")
    a(f"s_mov_b64 exec, 0xff\nbuffer_store_dword v{vX}, v{vY}, {WS}, 0 offen sc1\ns_mov_b64 exec, -1")
    a(f"{l}:")
    poll(a, vY, vU, 0)
    a(f"v_not_b32 v{vU}, v{vU}\nv_and_b32 v{vU}, 0x7ff, v{vU}")
    for k in range(8): a(f"v_readlane_b32 s{sKey+k}, v{vU}, {k}")
    a(f"v_and_b32 v{vT}, 3, v0\nv_lshlrev_b32 v{vT}, 3, v{vT}\nv_add_u32 v{vT}, {FL_Y + 128}, v{vT}\nbuffer_load_dwordx2 v[{vSv}:{vSv+1}], v{vT}, {WS}, 0 offen sc1")
    srd(a, S_B0 + 4, P_OUT, 4 << 20)
    a(f"s_lshr_b32 s{S_G}, s{sKq}, 1\ns_lshl_b32 s{S_G}, s{S_G}, 4\nv_and_b32 v{vTok}, 15, v0\nv_add_u32 v{vTok}, s{S_G}, v{vTok}")
    a(f"v_lshrrev_b32 v{vU}, 4, v0\nv_lshlrev_b32 v{vXo}, 11, v{vTok}\nv_lshl_add_u32 v{vXo}, v{vU}, 3, v{vXo}\nv_add_u32 v{vXo}, s{sCol}, v{vXo}")
    a(f"v_lshlrev_b32 v{vGo}, 2, v{vTok}\nv_add_u32 v{vGo}, {WS_RG + 8192}, v{vGo}")
    a(f"s_lshl_b32 s{S_G}, s{S_W}, 10\ns_add_u32 s{S_G}, s{S_G}, {SAVE}\nv_lshlrev_b32 v{vSa}, 4, v{vU}\nv_add_u32 v{vSa}, s{S_G}, v{vSa}")
    a(f"s_lshl_b32 s{S_G}, s{sKq}, 7\ns_add_u32 s{S_G}, s{S_G}, {FL_O}\nv_and_b32 v{vFo}, 31, v0\nv_lshlrev_b32 v{vFo}, 2, v{vFo}\nv_add_u32 v{vFo}, s{S_G}, v{vFo}")
    a(f"s_lshl_b32 s{sSrc}, s{sKq}, 16\ns_add_u32 s{sSrc}, s{sSrc}, {WS_O}\ns_mov_b32 s{sS}, 0\ns_mov_b32 s{sSl}, 0\ns_barrier")
    def avail(sSeg, vD):
        a(f"v_lshlrev_b32 v{vT}, 2, v{vD}\nv_and_or_b32 v{vT}, v0, 3, v{vT}\nv_subrev_u32 v{vT}, s{sSeg}, v{vT}\nv_and_b32 v{vU}, 3, v{vT}")
        a(f"v_cmp_gt_i32 vcc, 4, v{vT}\nv_cmp_eq_u32 s[{sT1}:{sT2}], 0, v{vU}\ns_and_b64 vcc, vcc, s[{sT1}:{sT2}]")
    ldP = "\n".join(f"buffer_load_dwordx4 v[{vR+4*r-4}:{vR+4*r-1}], v{vPl[r-1]}, {WS}, s{sSl} offen offset:{1024*r} sc1" for r in range(1, 4))
    ldF = f"buffer_load_dword v{vFv}, v{vFo}, {WS}, 0 offen sc1"
    a("L_o_fetch:")
    a(f"{ldF}\ns_waitcnt vmcnt(0)")
    avail(sS, vFv)
    l = a.label('of')
    a(f"s_cbranch_scc0 {l}\ns_sleep 1\ns_sub_u32 s{S_BUD}, s{S_BUD}, 1\ns_cbranch_scc0 L_o_fetch\ns_branch L_abort\n{l}:")
    g.dma_now()
    a(f"{ldF}\ns_mov_b32 s{sDef}, 0\ns_waitcnt vmcnt(0)")
    a("L_o_loop:")
    a(f"s_xor_b32 s{sM0}, s{sM0}, 0x10000\ns_add_u32 s{sSrc}, s{sSrc}, 0x40000\ns_add_u32 s{sT0}, s{sS}, 1")
    avail(sT0, vFv)
    a(f"s_cselect_b32 s{sPend}, 1, 0\ns_cselect_b32 s{sFrom}, {OOB}, s{sSrc}")
    a(f"s_lshl_b32 s{S_G+1}, s{sS}, 16\ns_lshl_b32 s{S_G}, s{sS}, 7")
    a(f"buffer_load_dwordx2 v[{vX}:{vX+1}], v{vXo}, {SX}, s{S_G+1} offen\nbuffer_load_dword v{vG}, v{vGo}, {WS}, s{S_G} offen sc1")
    a("s_barrier")
    tl(a, 16, sS)
    hooks = g.dma_hooks(sFrom)
    addh(hooks, o.get('ofl', 36), ldF)
    for i, l in enumerate(ldP.split("\n")): addh(hooks, 50 + 2 * i, l)
    g.compute(ring, False, hooks)
    g.toggle_read()
    acc = g.acc
    a(f"s_waitcnt vmcnt(0)\ns_cmp_eq_u32 s{sDef}, 0\ns_cbranch_scc1 L_o_pub")
    a("L_o_finalize:")
    a(f"v_bitop3_b32 v{vT}, v{vR}, v{vR+4}, s{sTag} bitop3:0x7e\nv_bitop3_b32 v{vT}, v{vT}, v{vR+8}, s{sTag} bitop3:0xf6\nv_and_b32 v{vT}, 1, v{vT}\nv_cmp_ne_u32 vcc, 0, v{vT}")
    for i in (0, 2): pk(a, 'add', vR + i, fA + i, vR + i); pk(a, 'add', vR + 4 + i, vR + 4 + i, vR + 8 + i)
    a(f"s_lshl_b32 s{S_G+1}, s{sFs}, 16\ns_cbranch_vccnz L_o_again")
    for i in (0, 2):
        pk(a, 'add', vR + i, vR + i, vR + 4 + i)
        a(f"v_pk_fma_f32 v[{vR+i}:{vR+i+1}], v[{vR+i}:{vR+i+1}], v[{fG}:{fG+1}], v[{fX+i}:{fX+i+1}] op_sel_hi:[1,0,1]")
    cvt(a, vR + 4, vR, vR + 1); cvt(a, vR + 5, vR + 2, vR + 3)
    a(f"buffer_store_dwordx2 v[{vR+4}:{vR+5}], v{vXo}, {SO}, s{S_G+1} offen")
    a(f"v_not_b32 v{vT}, v{vSv}\nv_not_b32 v{vU}, v{vSv+1}\nv_bfe_u32 v{vT}, v{vT}, 5, 6\nv_bfe_u32 v{vU}, v{vU}, 5, 6")
    a(f"v_cmp_eq_u32 vcc, s{sFs}, v{vT}\nv_cmp_eq_u32 s[{sT1}:{sT2}], s{sFs}, v{vU}\ns_or_b64 vcc, vcc, s[{sT1}:{sT2}]\ns_cbranch_scc1 L_o_save")
    a("L_o_saved:")
    a(f"s_cmp_eq_u32 s{sFs}, {o.get('yseg', 58)}\ns_cbranch_scc1 L_o_ysum")
    a("L_o_ydone:")
    tl(a, 96, sFs)
    a(f"s_cmp_eq_u32 s{sDef}, 2\ns_cbranch_scc1 L_o_idle")
    a("L_o_pub:")
    a(f"s_and_b32 s{sSl}, s{sS}, 1\ns_lshl_b32 s{sSl}, s{sSl}, 19\ns_bfe_u32 s{sTag}, s{sS}, 0x10001\ns_mov_b32 s{sFs}, s{sS}")
    a(f"v_mul_f32 v{fG}, {hex(f32bits(-LOG2E))}, v{vG}\nv_exp_f32 v{fG}, v{fG}")
    for r in range(1, 4):
        a(f"v_and_or_b32 v{acc+4*r}, v{acc+4*r}, -2, s{sTag}")
        a(f"buffer_store_dwordx4 v[{acc+4*r}:{acc+4*r+3}], v{vPs}, {WS}, s{sSl} offen offset:{1024*r}")
    a(f"v_add_f32 v{fG}, 1.0, v{fG}\nv_rcp_f32 v{fG}, v{fG}")
    a(f"v_lshlrev_b32 v{fX}, 16, v{vX}\nv_and_b32 v{fX+1}, 0xffff0000, v{vX}\nv_lshlrev_b32 v{fX+2}, 16, v{vX+1}\nv_and_b32 v{fX+3}, 0xffff0000, v{vX+1}")
    for i in (0, 2): pk(a, 'add', fA + i, acc + i, fX + i, "neg_lo:[0,1] neg_hi:[0,1]")
    a(f"s_add_u32 s{sS}, s{sS}, 1\ns_add_u32 s{sDef}, s{sPend}, 1\ns_cmp_eq_u32 s{sPend}, 0\ns_cbranch_scc1 L_o_loop")
    a("L_o_again:")
    a(f"{ldP}\ns_sub_u32 s{S_BUD}, s{S_BUD}, 1\ns_cbranch_scc1 L_abort\ns_waitcnt vmcnt(0)\ns_branch L_o_finalize")
    a("L_o_idle:")
    a(f"s_cmp_lt_u32 s{sS}, 64\ns_cbranch_scc1 L_o_fetch")
    a(f"v_and_b32 v{vT}, 3, v0\nv_lshlrev_b32 v{vT}, 8, v{vT}\ns_lshl_b32 s{S_G}, s{S_W}, 10\ns_add_u32 s{S_G}, s{S_G}, {SAVE}\nv_add_u32 v{vT}, s{S_G}, v{vT}\nv_lshrrev_b32 v{vU}, 2, v0")
    a(f"ds_read2_b32 v[{vG}:{vG+1}], v{vT} offset0:16 offset1:48\nv_lshl_add_u32 v{vT}, v{vU}, 2, v{vT}\nds_read2_b32 v[{vX}:{vX+1}], v{vT} offset0:0 offset1:32")
    a(f"s_lshr_b32 s{S_G}, s{sKq}, 1")
    for i in range(2):
        a(f"v_not_b32 v{vR+i}, v{vSv+i}\nv_bfe_u32 v{vT}, v{vR+i}, 4, 1\nv_xor_b32 v{vT}, s{S_G}, v{vT}\nv_and_b32 v{vR+i}, 0x7ff, v{vR+i}\nv_lshlrev_b32 v{vR+i}, 11, v{vR+i}")
        a(f"v_lshl_add_u32 v{vR+i}, v{vU}, 1, v{vR+i}\nv_lshl_add_u32 v{vR+i}, v{vT}, 31, v{vR+i}")
    a("s_waitcnt lgkmcnt(0)")
    for i in range(2):
        a(f"v_sub_f32 v{vG+i}, 1.0, v{vG+i}\nv_fma_f32 v{vX+i}, v{vG+i}, v{vY+i}, v{vX+i}")
        cvt(a, vX + i, vX + i, vX + i)
    a("s_waitcnt vmcnt(0)")
    for i in range(2): a(f"buffer_store_short v{vX+i}, v{vR+i}, {SO}, s{sCol} offen")
    a("s_branch L_drain")
    a("L_o_save:")
    a(f"s_lshl_b32 s{S_G}, s{sFs}, 5\nv_add_u32 v{vT}, s{S_G}, v{vTok}")
    for k in range(8):
        a(f"v_cmp_eq_u32 vcc, s{sKey+k}, v{vT}\ns_mov_b64 exec, vcc\nds_write_b128 v{vSa}, v[{vR}:{vR+3}] offset:{128*k}\nds_write_b32 v{vSa}, v{fG} offset:{128*k+64}\ns_mov_b64 exec, -1")
    a("s_waitcnt lgkmcnt(0)\ns_branch L_o_saved")
    a("L_o_ysum:")
    a(f"s_lshr_b32 s{S_G}, s{sCol}, 1\ns_add_u32 s{S_G}, s{S_G}, {FL_Y + 1024}\nv_and_b32 v{vT}, 3, v0\nv_lshlrev_b32 v{vT}, 2, v{vT}\nv_add_u32 v{vT}, s{S_G}, v{vT}")
    poll(a, vT, vU, 0)
    a(f"s_lshl_b32 s{S_G}, s{sCol}, 4\ns_add_u32 s{S_G}, s{S_G}, {WS_YS}\nv_lshlrev_b32 v{vT}, 3, v0")
    a(f"buffer_load_dwordx2 v[{big}:{big+1}], v{vT}, {WS}, s{S_G} offen sc1")
    for i in range(2):
        a(f"v_not_b32 v{vY+i}, v{vSv+i}\nv_ashrrev_i32 v{vY+i}, 31, v{vY+i}\nv_or_b32 v{vY+i}, 0x80000000, v{vY+i}\nv_xor_b32 v{vY+i}, v{vY+i}, v{vSv+i}\nv_and_b32 v{vY+i}, 0xffff0000, v{vY+i}")
        a(f"v_mul_f32 v{vY+i}, {hex(f32bits(-LOG2E))}, v{vY+i}\nv_exp_f32 v{vY+i}, v{vY+i}\nv_add_f32 v{vY+i}, 1.0, v{vY+i}\nv_rcp_f32 v{vY+i}, v{vY+i}")
    a("s_waitcnt vmcnt(0)")
    pk(a, 'mul', vY, vY, big)
    a("s_branch L_o_ydone")
```
